```python
import torch

def _softmax(x, axis=-1):
    return torch.softmax(x, dim=axis)
def _gelu(x):
    return torch.nn.functional.gelu(x, approximate="tanh")
def _silu(x):
    return torch.nn.functional.silu(x)
def _sigmoid(x):
    return torch.sigmoid(x)
def _layernorm(x, axis=-1, eps=1e-5):
    m = x.mean(dim=axis, keepdim=True)
    v = x.var(dim=axis, keepdim=True, unbiased=False)
    return (x - m) / torch.sqrt(v + eps)
def _scatter_add(tgt, idx, src, axis=0):
    return tgt.clone().index_add_(axis, idx, src)
def _segment_sum(src, seg, n):
    out = torch.zeros((n,) + src.shape[1:], dtype=src.dtype)
    return out.index_add_(0, seg, src)
def _pad(x, pw):
    flat = tuple(v for pair in reversed(pw) for v in pair)
    return torch.nn.functional.pad(x, flat)

kernel_name = 'sequential_preLN__compressed_kv_cla__glu_gated_glu__prompt'

def setup_inputs():

    _w = (lambda a: (lambda t: t.to(torch.bfloat16) if t.is_floating_point() else t)(torch.as_tensor(a)))
    def _A_setup():
        B, H, Sq, Sk, D, M = 1, 32, 2048, 2048, 128, 512
        Dc = 4 * D
        return {
            "x": _w((lambda *s: torch.randn(*s, dtype=torch.bfloat16) * 0.05)(B, Sq, M)),
            "c_kv": _w((lambda *s: torch.randn(*s, dtype=torch.bfloat16) * 0.4)(B, Sk, Dc)),
            "w_q": _w((lambda *s: torch.randn(*s, dtype=torch.bfloat16) * 3.2)(M, H, D) * (M ** -0.5)),
            "w_uk": _w((lambda *s: torch.randn(*s, dtype=torch.bfloat16) * 3.2)(Dc, H, D) * (Dc ** -0.5)),
            "w_uv": _w((lambda *s: torch.randn(*s, dtype=torch.bfloat16) * 0.4)(Dc, H, D) * (Dc ** -0.5)),
            "w_o": _w((lambda *s: torch.randn(*s, dtype=torch.bfloat16) * 0.4)(H, D, M) * ((H * D) ** -0.5)),
        }
    _A_in = _A_setup()

    def _B_setup():
        B, S, D, F = 1, 2048, 512, 1792
        return {
            "x": _w((lambda *s: torch.randn(*s, dtype=torch.bfloat16) * 0.05)(B, S, D)),
            "w_gate": _w((lambda *s: torch.randn(*s, dtype=torch.bfloat16) * 0.05)(D, F)),
            "w_up": _w((lambda *s: torch.randn(*s, dtype=torch.bfloat16) * 0.05)(D, F)),
            "w_down": _w((lambda *s: torch.randn(*s, dtype=torch.bfloat16) * 0.05)(F, D)),
        }
    _B_in = _B_setup()

    return {
        "A_x": _A_in["x"],
        "A_c_kv": _A_in["c_kv"],
        "A_w_q": _A_in["w_q"],
        "A_w_uk": _A_in["w_uk"],
        "A_w_uv": _A_in["w_uv"],
        "A_w_o": _A_in["w_o"],
        "B_x": _B_in["x"],
        "B_w_gate": _B_in["w_gate"],
        "B_w_up": _B_in["w_up"],
        "B_w_down": _B_in["w_down"],
    }

def reference(A_x, A_c_kv, A_w_q, A_w_uk, A_w_uv, A_w_o, B_x, B_w_gate, B_w_up, B_w_down):
    def _A_ref(x, c_kv, w_q, w_uk, w_uv, w_o):
        B, Sq, M = x.shape[0], x.shape[1], x.shape[2]
        Sk = c_kv.shape[1]
        H, D = w_q.shape[1], w_q.shape[2]
        q = torch.einsum("bqm,mhd->bhqd", x, w_q)
        k = torch.einsum("bkc,chd->bhkd", c_kv, w_uk)
        v = torch.einsum("bkc,chd->bhkd", c_kv, w_uv)
        scores = torch.einsum("bhqd,bhkd->bhqk", q, k) * (D ** -0.5)
        off = Sk - Sq
        qi = torch.arange(Sq)[:, None]
        kj = torch.arange(Sk)[None, :]
        cmask = kj <= (qi + off)
        scores = torch.where(cmask[None, None], scores, -1e9)
        p = _softmax(scores, axis=-1)
        ctx = torch.einsum("bhqk,bhkd->bhqd", p, v)
        return torch.einsum("bhqd,hdm->bqm", ctx, w_o)

    def _B_ref(x, w_gate, w_up, w_down):
        g = torch.einsum("bsd,df->bsf", x, w_gate)
        u = torch.einsum("bsd,df->bsf", x, w_up)
        h = _sigmoid(g) * u
        return torch.einsum("bsf,fd->bsd", h, w_down)

    x = A_x
    h = x + _A_ref(_layernorm(x, axis=-1), A_c_kv, A_w_q, A_w_uk, A_w_uv, A_w_o)
    h2 = h + _B_ref(_layernorm(h, axis=-1), B_w_gate, B_w_up, B_w_down)
    return h2
```

```python
class Asm:
    def __init__(self):
        self.lines = []
        self._uid = 0

    def __call__(self, s):
        self.lines.append("    " + s)

    def label(self, name):
        self.lines.append(name + ":")

    def raw(self, s):
        self.lines.append(s)

    def comment(self, s):
        self.lines.append("    ; " + s)

    def uid(self, base):
        self._uid += 1
        return f"L_{base}_{self._uid}"

    def text(self):
        return "\n".join(self.lines) + "\n"


def vr(base, n=1):
    return f"v{base}" if n == 1 else f"v[{base}:{base + n - 1}]"


def sr(base, n=1):
    return f"s{base}" if n == 1 else f"s[{base}:{base + n - 1}]"


def kernel_header(a, name):
    a.raw(f".globl {name}")
    a.raw(".p2align 8")
    a.raw(f".type {name},@function")
    a.label(name)


def kernel_descriptor(a, name, nvgpr, nsgpr=102):
    acc = (nvgpr + 3) // 4 * 4
    a.raw(".p2align 6")
    a.raw(f".amdhsa_kernel {name}")
    a.raw(f"  .amdhsa_next_free_vgpr {nvgpr}")
    a.raw(f"  .amdhsa_next_free_sgpr {nsgpr}")
    a.raw(f"  .amdhsa_accum_offset {acc}")
    a.raw("  .amdhsa_group_segment_fixed_size 0")
    a.raw("  .amdhsa_kernarg_size 104")
    a.raw("  .amdhsa_user_sgpr_count 2")
    a.raw("  .amdhsa_user_sgpr_kernarg_segment_ptr 1")
    a.raw("  .amdhsa_system_sgpr_workgroup_id_x 1")
    a.raw(".end_amdhsa_kernel")


def make_srd(a, dst, ptr_lo, offset, nbytes):
    if offset == 0:
        a(f"s_mov_b32 s{dst}, s{ptr_lo}")
        a(f"s_mov_b32 s{dst + 1}, s{ptr_lo + 1}")
    else:
        a(f"s_add_u32 s{dst}, s{ptr_lo}, {offset}")
        a(f"s_addc_u32 s{dst + 1}, s{ptr_lo + 1}, 0")
    a(f"s_mov_b32 s{dst + 2}, {nbytes}")
    a(f"s_mov_b32 s{dst + 3}, 0x00020000")


def wave_sum(a, v, tmp, s0):
    a("s_nop 1")
    a(f"v_add_f32_dpp v{tmp}, v{v}, v{v} quad_perm:[1,0,3,2] row_mask:0xf bank_mask:0xf")
    a("s_nop 1")
    a(f"v_add_f32_dpp v{v}, v{tmp}, v{tmp} quad_perm:[2,3,0,1] row_mask:0xf bank_mask:0xf")
    a("s_nop 1")
    a(f"v_add_f32_dpp v{tmp}, v{v}, v{v} row_half_mirror row_mask:0xf bank_mask:0xf")
    a("s_nop 1")
    a(f"v_add_f32_dpp v{v}, v{tmp}, v{tmp} row_mirror row_mask:0xf bank_mask:0xf")
    a("s_nop 1")
    a(f"v_readlane_b32 s{s0}, v{v}, 0")
    a(f"v_readlane_b32 s{s0 + 1}, v{v}, 16")
    a(f"v_readlane_b32 s{s0 + 2}, v{v}, 32")
    a(f"v_readlane_b32 s{s0 + 3}, v{v}, 48")
    a("s_nop 1")
    a(f"v_mov_b32 v{v}, s{s0}")
    a(f"v_add_f32 v{v}, s{s0 + 1}, v{v}")
    a(f"v_add_f32 v{v}, s{s0 + 2}, v{v}")
    a(f"v_add_f32 v{v}, s{s0 + 3}, v{v}")
```

```python
from asmlib import *
from gemm import epilogue_to_lds, epilogue_read_addrs, S_WAVE, S_T0, S_T1

MB = 1 << 20


class Shim:
    pass


def gen_attn_kernel(a, WS_Q, WS_K, WS_V, WS_CTX, KA_WS):
    name = "attn_kernel"
    kernel_header(a, name)
    end = a.uid("end")
    L = 1
    T = 2
    V_DK = 12
    V_DV = 13
    V_KA = 14
    V_VA = 22
    V_M = 26
    V_L = 27
    V_AL = 28
    V_MQ = 29
    V_QO = 30
    V_Q = 32
    V_O = 64
    V_S = 128
    V_P = 160
    V_F = 176
    V_END = 240
    S_G, S_WQ, S_HB, S_QB, S_N, S_KV, S_J, S_C, S_M0, S_PH = 34, 35, 36, 37, 38, 39, 40, 41, 42, 43
    S_MASK = 44

    a("s_cmp_ge_u32 s2, 256")
    a(f"s_cbranch_scc1 {end}")
    a(f"s_load_dwordx2 s[20:21], s[0:1], {KA_WS}")
    a(f"v_and_b32 v{L}, 63, v0")
    a(f"v_lshrrev_b32 v{T}, 6, v0")
    a("s_nop 0")
    a(f"v_readfirstlane_b32 s{S_WAVE}, v{T}")
    a("s_nop 3")
    a(f"s_lshr_b32 s{S_G}, s{S_WAVE}, 2")
    a(f"s_and_b32 s{S_WQ}, s{S_WAVE}, 3")
    a(f"s_and_b32 s{S_HB}, s2, 7")
    a(f"s_lshl_b32 s{S_HB}, s{S_HB}, 2")
    a(f"s_bfe_u32 s{S_T0}, s2, 0x20003")
    a(f"s_add_u32 s{S_HB}, s{S_HB}, s{S_T0}")
    a(f"s_lshl_b32 s22, s{S_HB}, 8")
    a(f"s_lshl_b32 s{S_HB}, s{S_HB}, 19")
    a("s_lshr_b32 s23, s2, 5")
    a(f"s_mov_b32 s{S_C}, 0x3e0293ee")
    a(f"s_lshl_b32 s{S_M0}, s{S_G}, 16")
    a(f"s_lshl_b32 s{S_T0}, s{S_WQ}, 10")
    a(f"s_add_u32 s{S_M0}, s{S_M0}, s{S_T0}")
    a("s_waitcnt lgkmcnt(0)")
    make_srd(a, 4, 20, WS_Q, 16 * MB)
    make_srd(a, 8, 20, WS_K, 16 * MB)
    make_srd(a, 12, 20, WS_V, 16 * MB)
    make_srd(a, 16, 20, WS_CTX, 16 * MB)
    a(f"v_lshrrev_b32 v{T}, 4, v{L}")
    a(f"v_and_b32 v{T + 1}, 15, v{L}")
    a(f"s_lshl_b32 s{S_T0}, s{S_WQ}, 2")
    a(f"v_add_u32 v{T + 2}, s{S_T0}, v{T}")
    a(f"v_xor_b32 v{T + 2}, v{T + 2}, v{T + 1}")
    a(f"v_lshlrev_b32 v{T + 2}, 4, v{T + 2}")
    a(f"v_lshl_add_u32 v{V_DK}, v{T}, 8, v{T + 2}")
    a(f"v_lshlrev_b32 v{T + 2}, 2, v{T}")
    a(f"v_xor_b32 v{T + 2}, v{T + 2}, v{T + 1}")
    a(f"v_lshlrev_b32 v{T + 2}, 4, v{T + 2}")
    a(f"v_lshl_add_u32 v{V_DV}, v{T}, 8, v{T + 2}")
    a(f"v_and_b32 v{T}, 31, v{L}")
    a(f"v_and_b32 v{T + 1}, 15, v{L}")
    a(f"v_lshrrev_b32 v{T + 2}, 5, v{L}")
    a(f"v_xor_b32 v{T + 1}, v{T + 1}, v{T + 2}")
    a(f"v_lshlrev_b32 v{T}, 8, v{T}")
    a(f"s_lshl_b32 s{S_T0}, s{S_G}, 16")
    a(f"v_add_u32 v{T}, s{S_T0}, v{T}")
    for s in range(8):
        a(f"v_xor_b32 v{T + 3}, {2 * s}, v{T + 1}")
        a(f"v_lshl_add_u32 v{V_KA + s}, v{T + 3}, 4, v{T}")
    a(f"v_and_b32 v{T}, 15, v{L}")
    a(f"v_lshrrev_b32 v{T + 1}, 2, v{T}")
    a(f"v_and_b32 v{T + 2}, 3, v{T}")
    a(f"v_lshrrev_b32 v{T + 3}, 5, v{L}")
    a(f"v_lshl_add_u32 v{T + 3}, v{T + 3}, 2, v{T + 1}")
    a(f"v_lshlrev_b32 v{T + 3}, 8, v{T + 3}")
    a(f"v_and_b32 v{T + 4}, 1, v{T + 2}")
    a(f"v_lshl_add_u32 v{T + 3}, v{T + 4}, 3, v{T + 3}")
    a(f"v_lshrrev_b32 v{T + 4}, 1, v{T + 2}")
    a(f"v_bfe_u32 v{T + 5}, v{L}, 4, 1")
    a(f"v_lshl_add_u32 v{T + 4}, v{T + 5}, 1, v{T + 4}")
    a(f"v_lshl_add_u32 v{T + 3}, v{T + 4}, 4, v{T + 3}")
    a(f"s_add_u32 s{S_T0}, s{S_T0}, 16384")
    a(f"v_add_u32 v{T + 3}, s{S_T0}, v{T + 3}")
    for db in range(4):
        a(f"v_xor_b32 v{T + 4}, {db}, v{T + 1}")
        a(f"v_lshl_add_u32 v{V_VA + db}, v{T + 4}, 6, v{T + 3}")
    a(f"v_and_b32 v{T}, 31, v{L}")
    a(f"s_lshl_b32 s{S_T0}, s{S_WQ}, 5")
    a(f"s_lshl_b32 s{S_T1}, s{S_G}, 6")
    a(f"s_sub_u32 s{S_T0}, s{S_T0}, s{S_T1}")
    a(f"v_add_u32 v{T}, s{S_T0}, v{T}")
    a(f"v_lshrrev_b32 v{T + 1}, 5, v{L}")
    a(f"v_lshlrev_b32 v{T + 1}, 2, v{T + 1}")
    a(f"v_sub_u32 v{V_MQ}, v{T}, v{T + 1}")
    a(f"v_and_b32 v{T}, 31, v{L}")
    a(f"v_lshrrev_b32 v{T + 1}, 5, v{L}")
    a(f"v_lshlrev_b32 v{T + 1}, 4, v{T + 1}")
    a(f"v_lshl_add_u32 v{V_QO}, v{T}, 8, v{T + 1}")
    a(f"s_mov_b32 s{S_PH}, 0")
    a(f"s_sub_u32 s{S_QB}, 15, s23")

    phase = a.uid("phase")
    a.label(phase)

    def dma(buf):
        for which, vo, srd in ((0, V_DK, 8), (1, V_DV, 12)):
            for t in range(4):
                a(f"s_add_u32 m0, s{S_M0}, {buf * 32768 + which * 16384 + t * 4096}")
                if t == 0:
                    a("s_nop 0")
                    a(f"buffer_load_dwordx4 v{vo}, s[{srd}:{srd + 3}], s{S_KV} offen lds")
                else:
                    a(f"s_add_u32 s{S_T0}, s{S_KV}, {t * 4096}")
                    a(f"buffer_load_dwordx4 v{vo}, s[{srd}:{srd + 3}], s{S_T0} offen lds")
        a(f"s_add_u32 s{S_KV}, s{S_KV}, 32768")

    a(f"s_lshl_b32 s{S_KV}, s{S_G}, 14")
    a(f"s_add_u32 s{S_KV}, s{S_KV}, s{S_HB}")
    a(f"s_lshl_b32 s{S_T0}, s{S_WQ}, 10")
    a(f"s_add_u32 s{S_KV}, s{S_KV}, s{S_T0}")
    dma(0)
    a(f"s_lshl_b32 s{S_T0}, s{S_QB}, 7")
    a(f"s_lshl_b32 s{S_T1}, s{S_WQ}, 5")
    a(f"s_add_u32 s{S_T0}, s{S_T0}, s{S_T1}")
    a(f"s_lshl_b32 s{S_T0}, s{S_T0}, 8")
    a(f"s_add_u32 s{S_T0}, s{S_T0}, s{S_HB}")
    for s in range(8):
        a(f"buffer_load_dwordx4 {vr(V_Q + 4 * s, 4)}, v{V_QO}, s[4:7], s{S_T0} offen offset:{32 * s}")
    for r in range(64):
        a(f"v_mov_b32 v{V_O + r}, 0")
    a(f"v_mov_b32 v{V_M}, 0xe0ad78ec")
    a(f"v_mov_b32 v{V_L}, 0")
    a(f"s_add_u32 s{S_N}, s{S_QB}, 1")
    a(f"s_mov_b32 s{S_J}, 0")

    def tile(buf):
        nodma = a.uid("nodma")
        nomask = a.uid("nomask")
        a("s_waitcnt vmcnt(0)")
        a("s_barrier")
        a(f"s_add_u32 s{S_J}, s{S_J}, 1")
        a(f"s_cmp_ge_u32 s{S_J}, s{S_N}")
        a(f"s_cbranch_scc1 {nodma}")
        dma(buf ^ 1)
        a.label(nodma)
        for kb in range(2):
            for s in range(8):
                a(f"ds_read_b128 {vr(V_F + (kb * 8 + s) * 4, 4)}, v{V_KA + s} offset:{buf * 32768 + kb * 8192}")
        for kb in range(2):
            for s in range(8):
                idx = kb * 8 + s
                a(f"s_waitcnt lgkmcnt({15 - idx})")
                D = V_S + 16 * kb
                C = "0" if s == 0 else vr(D, 16)
                a(f"v_mfma_f32_32x32x16_bf16 {vr(D, 16)}, {vr(V_F + idx * 4, 4)}, {vr(V_Q + 4 * s, 4)}, {C}")
        for ks in range(4):
            for db in range(4):
                F = V_F + (ks * 4 + db) * 4
                a(f"ds_read_b64_tr_b16 {vr(F, 2)}, v{V_VA + db} offset:{buf * 32768 + 16 * ks * 256}")
                a(f"ds_read_b64_tr_b16 {vr(F + 2, 2)}, v{V_VA + db} offset:{buf * 32768 + (16 * ks + 8) * 256}")
        a("s_nop 7")
        a(f"s_cmp_lt_u32 s{S_J}, s{S_N}")
        a(f"s_cbranch_scc1 {nomask}")
        a(f"v_mov_b32 v{T}, 0xf149f2ca")
        for r0 in range(0, 32, 4):
            for i in range(4):
                r = r0 + i
                key = (r >> 4) * 32 + ((r & 15) >> 2) * 8 + (r & 3)
                a(f"v_cmp_le_i32 s[{S_MASK + 2 * i}:{S_MASK + 2 * i + 1}], {key}, v{V_MQ}")
            a("s_nop 1")
            for i in range(4):
                r = r0 + i
                a(f"v_cndmask_b32 v{V_S + r}, v{T}, v{V_S + r}, s[{S_MASK + 2 * i}:{S_MASK + 2 * i + 1}]")
        a.label(nomask)
        a(f"v_max3_f32 v{T}, v{V_S}, v{V_S + 1}, v{V_S + 2}")
        a(f"v_max3_f32 v{T + 1}, v{V_S + 3}, v{V_S + 4}, v{V_S + 5}")
        for r in range(6, 30, 4):
            a(f"v_max3_f32 v{T}, v{T}, v{V_S + r}, v{V_S + r + 1}")
            a(f"v_max3_f32 v{T + 1}, v{T + 1}, v{V_S + r + 2}, v{V_S + r + 3}")
        a(f"v_max3_f32 v{T}, v{T}, v{V_S + 30}, v{V_S + 31}")
        a(f"v_max_f32 v{T}, v{T}, v{T + 1}")
        a(f"v_mov_b32 v{T + 1}, v{T}")
        a("s_nop 1")
        a(f"v_permlane32_swap_b32 v{T}, v{T + 1}")
        a(f"v_max_f32 v{T}, v{T}, v{T + 1}")
        a(f"v_mul_f32 v{T}, s{S_C}, v{T}")
        a(f"v_max_f32 v{T}, v{T}, v{V_M}")
        a(f"v_sub_f32 v{V_AL}, v{V_M}, v{T}")
        a(f"v_exp_f32 v{V_AL}, v{V_AL}")
        a(f"v_mov_b32 v{V_M}, v{T}")
        for r in range(32):
            a(f"v_fma_f32 v{V_S + r}, v{V_S + r}, s{S_C}, -v{V_M}")
        for r in range(32):
            a(f"v_exp_f32 v{V_S + r}, v{V_S + r}")
        a(f"v_mul_f32 v{V_L}, v{V_L}, v{V_AL}")
        a(f"v_add_f32 v{T}, v{V_S}, v{V_S + 1}")
        a(f"v_add_f32 v{T + 1}, v{V_S + 2}, v{V_S + 3}")
        for r in range(4, 32, 2):
            a(f"v_add_f32 v{T}, v{T}, v{V_S + r}")
            a(f"v_add_f32 v{T + 1}, v{T + 1}, v{V_S + r + 1}")
        a(f"v_add_f32 v{V_L}, v{V_L}, v{T}")
        a(f"v_add_f32 v{V_L}, v{V_L}, v{T + 1}")
        for r in range(16):
            a(f"v_cvt_pk_bf16_f32 v{V_P + r}, v{V_S + 2 * r}, v{V_S + 2 * r + 1}")
        for r in range(64):
            a(f"v_mul_f32 v{V_O + r}, v{V_O + r}, v{V_AL}")
        a("s_nop 1")
        a("s_waitcnt lgkmcnt(0)")
        for ks in range(4):
            for db in range(4):
                F = V_F + (ks * 4 + db) * 4
                D = V_O + 16 * db
                a(f"v_mfma_f32_32x32x16_bf16 {vr(D, 16)}, {vr(F, 4)}, {vr(V_P + 4 * ks, 4)}, {vr(D, 16)}")

    loop = a.uid("aloop")
    done = a.uid("adone")
    a.label(loop)
    tile(0)
    a(f"s_cmp_ge_u32 s{S_J}, s{S_N}")
    a(f"s_cbranch_scc1 {done}")
    tile(1)
    a(f"s_cmp_lt_u32 s{S_J}, s{S_N}")
    a(f"s_cbranch_scc1 {loop}")
    a.label(done)

    a("s_barrier")
    a(f"v_mov_b32 v{T}, v{V_L}")
    a("s_nop 1")
    a(f"v_permlane32_swap_b32 v{T}, v{V_L}")
    a(f"v_add_f32 v{V_L}, v{V_L}, v{T}")
    a(f"s_mul_i32 s{S_T0}, s{S_WAVE}, 8704")
    a(f"v_lshlrev_b32 v{T}, 4, v{L}")
    a(f"v_add_u32 v{T + 1}, s{S_T0}, v{T}")
    a(f"s_xor_b32 s{S_T1}, s{S_WAVE}, 4")
    a(f"s_mul_i32 s{S_T1}, s{S_T1}, 8704")
    a(f"v_add_u32 v{T + 2}, s{S_T1}, v{T}")
    a(f"v_lshlrev_b32 v{T}, 2, v{L}")
    a(f"v_add_u32 v{T + 3}, s{S_T0}, v{T}")
    a(f"v_add_u32 v{T + 4}, s{S_T1}, v{T}")
    g1 = a.uid("g1")
    gj = a.uid("gj")
    a(f"s_cmp_eq_u32 s{S_G}, 1")
    a(f"s_cbranch_scc1 {g1}")
    for t in range(8):
        a(f"ds_write_b128 v{T + 1}, {vr(V_O + 32 + 4 * t, 4)} offset:{t * 1024}")
    a(f"s_branch {gj}")
    a.label(g1)
    for t in range(8):
        a(f"ds_write_b128 v{T + 1}, {vr(V_O + 4 * t, 4)} offset:{t * 1024}")
    for r in range(32):
        a(f"v_mov_b32 v{V_O + r}, v{V_O + 32 + r}")
    a.label(gj)
    a(f"ds_write_b32 v{T + 3}, v{V_M} offset:8192")
    a(f"ds_write_b32 v{T + 3}, v{V_L} offset:8448")
    a("s_waitcnt lgkmcnt(0)")
    a("s_barrier")
    for t in range(8):
        a(f"ds_read_b128 {vr(V_F + 4 * t, 4)}, v{T + 2} offset:{t * 1024}")
    a(f"ds_read_b32 v{T + 5}, v{T + 4} offset:8192")
    a(f"ds_read_b32 v{T + 6}, v{T + 4} offset:8448")
    a("s_waitcnt lgkmcnt(0)")
    a(f"v_max_f32 v{T}, v{V_M}, v{T + 5}")
    a(f"v_sub_f32 v{T + 1}, v{V_M}, v{T}")
    a(f"v_sub_f32 v{T + 2}, v{T + 5}, v{T}")
    a(f"v_exp_f32 v{T + 1}, v{T + 1}")
    a(f"v_exp_f32 v{T + 2}, v{T + 2}")
    a("s_nop 0")
    a(f"v_mul_f32 v{T + 3}, v{T + 1}, v{V_L}")
    a(f"v_fmac_f32 v{T + 3}, v{T + 2}, v{T + 6}")
    a(f"v_rcp_f32 v{T + 3}, v{T + 3}")
    a("s_nop 0")
    a(f"v_mul_f32 v{T + 1}, v{T + 1}, v{T + 3}")
    a(f"v_mul_f32 v{T + 2}, v{T + 2}, v{T + 3}")
    for r in range(32):
        a(f"v_mul_f32 v{V_O + r}, v{V_O + r}, v{T + 1}")
        a(f"v_fmac_f32 v{V_O + r}, v{V_F + r}, v{T + 2}")
    a("s_barrier")
    c = Shim()
    c.v_lane, c.v_t, c.TM, c.MT = L, T, 32, 1
    pool = [V_P + 2 * i for i in range(8)]
    st = {"i": 0}

    def src(nb, mt, j):
        p = pool[st["i"] % len(pool)]
        st["i"] += 1
        r = V_O + 16 * nb + 4 * j
        a(f"v_cvt_pk_bf16_f32 v{p}, v{r}, v{r + 1}")
        a(f"v_cvt_pk_bf16_f32 v{p + 1}, v{r + 2}, v{r + 3}")
        return p
    RBo, region = epilogue_to_lds(a, c, 2, src)
    nad, rpi = epilogue_read_addrs(a, c, RBo, region, V_S)
    a(f"v_lshrrev_b32 v{T}, 3, v{L}")
    a(f"v_lshlrev_b32 v{T}, 13, v{T}")
    a(f"v_and_b32 v{T + 1}, 7, v{L}")
    a(f"v_lshl_add_u32 v{T + 8}, v{T + 1}, 4, v{T}")
    a(f"s_lshl_b32 s{S_T0}, s{S_QB}, 7")
    a(f"s_lshl_b32 s{S_T1}, s{S_WQ}, 5")
    a(f"s_add_u32 s{S_T0}, s{S_T0}, s{S_T1}")
    a(f"s_lshl_b32 s{S_T0}, s{S_T0}, 13")
    a(f"s_add_u32 s{S_T0}, s{S_T0}, s22")
    a(f"s_lshl_b32 s{S_T1}, s{S_G}, 7")
    a(f"s_add_u32 s{S_T0}, s{S_T0}, s{S_T1}")
    a("s_waitcnt lgkmcnt(0)")
    for i in range(4):
        a(f"ds_read_b128 {vr(V_F + 4 * i, 4)}, v{V_S + (i % nad)} offset:{i * rpi * RBo}")
    for i in range(4):
        a(f"s_waitcnt lgkmcnt({3 - i})")
        a(f"s_add_u32 s{S_T1}, s{S_T0}, {i * 8 * 8192}")
        a(f"buffer_store_dwordx4 {vr(V_F + 4 * i, 4)}, v{T + 8}, s[16:19], s{S_T1} offen")
    a("s_barrier")
    a(f"s_add_u32 s{S_PH}, s{S_PH}, 1")
    a(f"s_mov_b32 s{S_QB}, s23")
    a(f"s_cmp_lt_u32 s{S_PH}, 2")
    a(f"s_cbranch_scc1 {phase}")
    a.label(end)
    a("s_endpgm")
    return name, V_END, 131072
```

```python
from asmlib import vr, sr


class GemmCfg:
    def __init__(self, BM, BN, WM, WN, K, lda, ldb, nsub=1):
        self.BM, self.BN, self.WM, self.WN, self.K = BM, BN, WM, WN, K
        self.lda, self.ldb, self.nsub = lda, ldb, nsub
        self.NW = WM * WN
        self.TM, self.TN = BM // WM, BN // WN
        self.MT, self.NT = self.TM // 32, self.TN // 32
        self.BNs = BN // nsub
        self.RB = self.BNs * 2
        assert self.RB in (128, 256, 512)
        self.NTs = self.NT // nsub
        self.XST = BM * 128
        self.WST = 64 * BN * 2
        self.STAGE = self.XST + self.WST
        self.nsteps = K // 64
        assert self.nsteps % 2 == 0
        self.npx = BM // 8 // self.NW
        self.rpp = 1024 // self.RB
        self.npw = (64 // self.rpp) // self.NW
        assert self.npx >= 1 and self.npw >= 1
        self.v_lane = 1
        self.v_t = 2
        self.v_x = 10
        self.v_w = 11
        base = 12
        self.v_va = base
        base += 2 * self.NT
        self.v_vb = base
        base += 8
        base = (base + 3) // 4 * 4
        self.v_A = base
        base += 2 * self.NT * 4
        self.v_B = base
        base += 2 * self.MT * 4
        self.v_acc = base
        base += 16 * self.NT * self.MT
        self.v_end = base

    def acc(self, nt, mt):
        return self.v_acc + 16 * (nt * self.MT + mt)

    def reads_per_step(self):
        return 2 * self.NT + self.MT


S_SRD_X = 4
S_SRD_W = 8
S_WAVE = 24
S_XOFF = 25
S_WOFF = 26
S_CNT = 28
S_M0W = 29
S_T0 = 30
S_T1 = 31
S_WM = 32
S_WN = 33


def gemm_setup(a, c, s_m0, s_n0_list, s_k0=None):
    L = c.v_lane
    t = c.v_t
    a(f"v_and_b32 v{L}, 63, v0")
    a(f"v_lshrrev_b32 v{t}, 6, v0")
    a("s_nop 0")
    a(f"v_readfirstlane_b32 s{S_WAVE}, v{t}")
    a("s_nop 3")
    a(f"s_lshl_b32 s{S_M0W}, s{S_WAVE}, 10")
    a(f"s_and_b32 s{S_T0}, s{S_WAVE}, 1")
    a(f"s_and_b32 s{S_WM}, s{S_WAVE}, {c.WM - 1}")
    a(f"s_lshr_b32 s{S_WN}, s{S_WAVE}, {c.WM.bit_length() - 1}")
    a(f"s_lshl_b32 s{S_T1}, s{S_T0}, 2")
    a(f"v_lshrrev_b32 v{t}, 4, v{L}")
    a(f"v_add_u32 v{t}, s{S_T1}, v{t}")
    a(f"v_and_b32 v{t}, 7, v{t}")
    a(f"v_and_b32 v{t + 1}, 7, v{L}")
    a(f"v_xor_b32 v{t}, v{t}, v{t + 1}")
    a(f"v_lshlrev_b32 v{t}, 4, v{t}")
    a(f"v_lshrrev_b32 v{t + 1}, 3, v{L}")
    a(f"s_mov_b32 s{S_T1}, {c.lda}")
    a(f"v_mul_lo_u32 v{t + 1}, v{t + 1}, s{S_T1}")
    a(f"v_add_u32 v{c.v_x}, v{t}, v{t + 1}")
    cpr = c.RB // 16
    lg = cpr.bit_length() - 1
    a(f"v_lshrrev_b32 v{t}, {lg}, v{L}")
    if c.RB == 512:
        a(f"s_lshl_b32 s{S_T1}, s{S_T0}, 1")
        a(f"v_add_u32 v{t + 1}, s{S_T1}, v{t}")
        a(f"v_and_b32 v{t + 1}, 3, v{t + 1}")
        a(f"v_lshlrev_b32 v{t + 1}, 2, v{t + 1}")
    elif c.RB == 256:
        a(f"v_and_b32 v{t + 1}, 3, v{t}")
        a(f"v_lshlrev_b32 v{t + 1}, 2, v{t + 1}")
    else:
        a(f"v_lshrrev_b32 v{t + 1}, 1, v{t}")
        a(f"v_and_b32 v{t + 1}, 1, v{t + 1}")
        a(f"v_lshlrev_b32 v{t + 1}, 2, v{t + 1}")
    a(f"v_and_b32 v{t + 2}, {cpr - 1}, v{L}")
    a(f"v_xor_b32 v{t + 1}, v{t + 1}, v{t + 2}")
    a(f"v_lshlrev_b32 v{t + 1}, 4, v{t + 1}")
    a(f"s_mov_b32 s{S_T1}, {c.ldb}")
    a(f"v_mul_lo_u32 v{t}, v{t}, s{S_T1}")
    a(f"v_add_u32 v{c.v_w}, v{t}, v{t + 1}")
    a(f"s_lshl_b32 s{S_T0}, s{S_WAVE}, 3")
    a(f"s_add_u32 s{S_T0}, s{S_T0}, s{s_m0}")
    a(f"s_mul_i32 s{S_XOFF}, s{S_T0}, {c.lda}")
    if s_k0 is not None:
        a(f"s_lshl_b32 s{S_T0}, s{s_k0}, 1")
        a(f"s_add_u32 s{S_XOFF}, s{S_XOFF}, s{S_T0}")
    for sub in range(c.nsub):
        a(f"s_mul_i32 s{S_T0}, s{S_WAVE}, {c.rpp}")
        if s_k0 is not None:
            a(f"s_add_u32 s{S_T0}, s{S_T0}, s{s_k0}")
        a(f"s_mul_i32 s{S_WOFF + sub}, s{S_T0}, {c.ldb}")
        a(f"s_lshl_b32 s{S_T0}, s{s_n0_list[sub]}, 1")
        a(f"s_add_u32 s{S_WOFF + sub}, s{S_WOFF + sub}, s{S_T0}")


def gemm_dma(a, c, buf):
    xb = buf * c.STAGE
    wb = buf * c.STAGE + c.XST
    for t in range(c.npx):
        a(f"s_add_u32 m0, s{S_M0W}, {xb + t * c.NW * 1024}")
        if t == 0:
            a("s_nop 0")
            a(f"buffer_load_dwordx4 v{c.v_x}, s[{S_SRD_X}:{S_SRD_X + 3}], s{S_XOFF} offen lds")
        else:
            a(f"s_add_u32 s{S_T0}, s{S_XOFF}, {t * c.NW * 8 * c.lda}")
            a(f"buffer_load_dwordx4 v{c.v_x}, s[{S_SRD_X}:{S_SRD_X + 3}], s{S_T0} offen lds")
    for sub in range(c.nsub):
        srd = S_SRD_W + 4 * sub
        sb = wb + sub * 64 * c.RB
        for t in range(c.npw):
            a(f"s_add_u32 m0, s{S_M0W}, {sb + t * c.NW * 1024}")
            if t == 0:
                a("s_nop 0")
                a(f"buffer_load_dwordx4 v{c.v_w}, s[{srd}:{srd + 3}], s{S_WOFF + sub} offen lds")
            else:
                a(f"s_add_u32 s{S_T0}, s{S_WOFF + sub}, {t * c.NW * c.rpp * c.ldb}")
                a(f"buffer_load_dwordx4 v{c.v_w}, s[{srd}:{srd + 3}], s{S_T0} offen lds")
    a(f"s_add_u32 s{S_XOFF}, s{S_XOFF}, 128")
    for sub in range(c.nsub):
        a(f"s_add_u32 s{S_WOFF + sub}, s{S_WOFF + sub}, {64 * c.ldb}")


def gemm_read_addrs(a, c):
    L = c.v_lane
    t = c.v_t
    a(f"v_and_b32 v{t}, 31, v{L}")
    a(f"s_mul_i32 s{S_T0}, s{S_WM}, {c.TM}")
    a(f"v_add_u32 v{t}, s{S_T0}, v{t}")
    a(f"v_lshrrev_b32 v{t + 1}, 1, v{t}")
    a(f"v_and_b32 v{t + 1}, 7, v{t + 1}")
    a(f"v_lshrrev_b32 v{t + 2}, 5, v{L}")
    a(f"v_xor_b32 v{t + 1}, v{t + 1}, v{t + 2}")
    a(f"v_lshlrev_b32 v{t}, 7, v{t}")
    for s in range(4):
        a(f"v_xor_b32 v{t + 3}, {2 * s}, v{t + 1}")
        a(f"v_lshl_add_u32 v{c.v_vb + s}, v{t + 3}, 4, v{t}")
        a(f"v_add_u32 v{c.v_vb + 4 + s}, {c.STAGE}, v{c.v_vb + s}")
    a(f"v_and_b32 v{t}, 15, v{L}")
    a(f"v_lshrrev_b32 v{t + 1}, 2, v{t}")
    a(f"v_and_b32 v{t + 2}, 3, v{t}")
    a(f"v_lshrrev_b32 v{t + 3}, 5, v{L}")
    a(f"v_lshl_add_u32 v{t + 3}, v{t + 3}, 3, v{t + 1}")
    a(f"v_lshlrev_b32 v{t + 3}, {c.RB.bit_length() - 1}, v{t + 3}")
    a(f"v_and_b32 v{t + 4}, 1, v{t + 2}")
    a(f"v_lshl_add_u32 v{t + 3}, v{t + 4}, 3, v{t + 3}")
    a(f"v_lshrrev_b32 v{t + 4}, 1, v{t + 2}")
    a(f"v_bfe_u32 v{t + 5}, v{L}, 4, 1")
    a(f"v_lshl_add_u32 v{t + 4}, v{t + 5}, 1, v{t + 4}")
    a(f"v_lshl_add_u32 v{t + 3}, v{t + 4}, 4, v{t + 3}")
    if c.RB == 128:
        a(f"v_lshrrev_b32 v{t + 1}, 1, v{t + 1}")
    for nt in range(c.NT):
        sub = nt // c.NTs
        nts = nt % c.NTs
        a(f"s_mul_i32 s{S_T0}, s{S_WN}, {c.NTs}")
        a(f"s_add_u32 s{S_T0}, s{S_T0}, {nts}")
        a(f"v_xor_b32 v{t + 4}, s{S_T0}, v{t + 1}")
        a(f"v_lshl_add_u32 v{t + 4}, v{t + 4}, 6, v{t + 3}")
        a(f"v_add_u32 v{c.v_va + nt}, {c.XST + sub * 64 * c.RB}, v{t + 4}")
        a(f"v_add_u32 v{c.v_va + c.NT + nt}, {c.STAGE}, v{c.v_va + nt}")


def _reads(a, c, buf, s, st):
    for nt in range(c.NT):
        A = c.v_A + (st * c.NT + nt) * 4
        va = c.v_va + buf * c.NT + nt
        a(f"ds_read_b64_tr_b16 {vr(A, 2)}, v{va} offset:{16 * s * c.RB}")
        a(f"ds_read_b64_tr_b16 {vr(A + 2, 2)}, v{va} offset:{(16 * s + 4) * c.RB}")
    for mt in range(c.MT):
        B = c.v_B + (st * c.MT + mt) * 4
        a(f"ds_read_b128 {vr(B, 4)}, v{c.v_vb + buf * 4 + s} offset:{mt * 4096}")


def _mfmas(a, c, st):
    for nt in range(c.NT):
        A = c.v_A + (st * c.NT + nt) * 4
        for mt in range(c.MT):
            B = c.v_B + (st * c.MT + mt) * 4
            D = c.acc(nt, mt)
            a(f"v_mfma_f32_32x32x16_bf16 {vr(D, 16)}, {vr(A, 4)}, {vr(B, 4)}, {vr(D, 16)}")


def gemm_kstep_compute(a, c, buf):
    n = c.reads_per_step()
    _reads(a, c, buf, 0, 0)
    for s in range(4):
        if s < 3:
            _reads(a, c, buf, s + 1, (s + 1) & 1)
            a(f"s_waitcnt lgkmcnt({n})")
        else:
            a("s_waitcnt lgkmcnt(0)")
        _mfmas(a, c, s & 1)


def gemm_zero_acc(a, c):
    for r in range(16 * c.NT * c.MT):
        a(f"v_mov_b32 v{c.v_acc + r}, 0")


def gemm_mainloop(a, c):
    loop = a.uid("gloop")
    skip = a.uid("gskip")
    a(f"s_mov_b32 s{S_CNT}, {c.nsteps // 2}")
    a.label(loop)
    a("s_waitcnt vmcnt(0)")
    a("s_barrier")
    gemm_dma(a, c, 1)
    gemm_kstep_compute(a, c, 0)
    a("s_waitcnt vmcnt(0)")
    a("s_barrier")
    a(f"s_sub_u32 s{S_CNT}, s{S_CNT}, 1")
    a(f"s_cmp_eq_u32 s{S_CNT}, 0")
    a(f"s_cbranch_scc1 {skip}")
    gemm_dma(a, c, 0)
    a.label(skip)
    gemm_kstep_compute(a, c, 1)
    a(f"s_cmp_lg_u32 s{S_CNT}, 0")
    a(f"s_cbranch_scc1 {loop}")


def epilogue_to_lds(a, c, nblocks, src_fn):
    L = c.v_lane
    t = c.v_t
    RBo = nblocks * 64
    cpr = RBo // 16
    region = c.TM * RBo
    a(f"v_and_b32 v{t}, 31, v{L}")
    a(f"v_lshlrev_b32 v{t + 1}, {RBo.bit_length() - 1}, v{t}")
    a(f"v_lshrrev_b32 v{t + 2}, 5, v{L}")
    a(f"v_lshl_add_u32 v{t + 1}, v{t + 2}, 3, v{t + 1}")
    a(f"s_mul_i32 s{S_T0}, s{S_WAVE}, {region}")
    a(f"v_add_u32 v{t + 1}, s{S_T0}, v{t + 1}")
    lgc = cpr.bit_length() - 1
    a(f"v_bfe_u32 v{t + 2}, v{t}, {4 - lgc}, {lgc}")
    a(f"v_lshlrev_b32 v{t + 2}, 4, v{t + 2}")
    for nb in range(nblocks):
        for j in range(4):
            chunk = nb * 4 + j
            a(f"v_xor_b32 v{t + 3}, {chunk << 4}, v{t + 2}")
            a(f"v_add_u32 v{t + 3}, v{t + 3}, v{t + 1}")
            for mt in range(c.MT):
                p = src_fn(nb, mt, j)
                a(f"ds_write_b64 v{t + 3}, {vr(p, 2)} offset:{mt * 32 * RBo}")
    return RBo, region


def epilogue_read_addrs(a, c, RBo, region, vdst):
    L = c.v_lane
    t = c.v_t
    cpr = RBo // 16
    lg = cpr.bit_length() - 1
    rpi = 64 // cpr
    a(f"v_lshrrev_b32 v{t}, {lg}, v{L}")
    a(f"v_lshlrev_b32 v{t}, {RBo.bit_length() - 1}, v{t}")
    a(f"s_mul_i32 s{S_T0}, s{S_WAVE}, {region}")
    a(f"v_add_u32 v{t}, s{S_T0}, v{t}")
    a(f"v_and_b32 v{t + 1}, {cpr - 1}, v{L}")
    a(f"v_lshrrev_b32 v{t + 2}, 4, v{L}")
    a(f"v_xor_b32 v{t + 1}, v{t + 1}, v{t + 2}")
    a(f"v_lshlrev_b32 v{t + 1}, 4, v{t + 1}")
    nad = max(1, cpr // 4)
    for q in range(nad):
        a(f"v_xor_b32 v{t + 2}, {(4 * q) << 4}, v{t + 1}")
        a(f"v_add_u32 v{vdst + q}, v{t + 2}, v{t}")
    return nad, rpi
```

```python
import sys
sys.path.insert(0, "dev")
from asmlib import *
from gemm import *
from attn import gen_attn_kernel

MB = 1 << 20
WS_XN = 0 * MB
WS_H = 2 * MB
WS_HN = 4 * MB
WS_Q = 16 * MB
WS_K = 32 * MB
WS_V = 48 * MB
WS_CTX = 64 * MB
WS_PART = 80 * MB
WS_HH = 96 * MB

KA_X, KA_CKV, KA_WQ, KA_WUK, KA_WUV, KA_WO, KA_BX, KA_WG, KA_WU, KA_WD, KA_OUT, KA_DBG, KA_WS = [8 * i for i in range(13)]


def ln_row(a, vin, vt, s0, out_regs):
    f = vt
    acc = vt + 8
    tmp = vt + 9
    mean = vt + 10
    sd = vt + 11
    for i in range(4):
        a(f"v_lshlrev_b32 v{f + 2 * i}, 16, v{vin + i}")
        a(f"v_and_b32 v{f + 2 * i + 1}, 0xffff0000, v{vin + i}")
    a(f"v_add_f32 v{acc}, v{f}, v{f + 1}")
    for i in range(2, 8):
        a(f"v_add_f32 v{acc}, v{acc}, v{f + i}")
    wave_sum(a, acc, tmp, s0)
    a(f"v_mul_f32 v{mean}, 0x3b000000, v{acc}")
    a(f"v_sub_f32 v{tmp}, v{f}, v{mean}")
    a(f"v_mul_f32 v{acc}, v{tmp}, v{tmp}")
    for i in range(1, 8):
        a(f"v_sub_f32 v{tmp}, v{f + i}, v{mean}")
        a(f"v_fmac_f32 v{acc}, v{tmp}, v{tmp}")
    wave_sum(a, acc, tmp, s0)
    a(f"v_mul_f32 v{acc}, 0x3b000000, v{acc}")
    a(f"v_cvt_pk_bf16_f32 v{tmp}, v{mean}, v{acc}")
    a(f"v_lshlrev_b32 v{mean}, 16, v{tmp}")
    a(f"v_and_b32 v{acc}, 0xffff0000, v{tmp}")
    a(f"v_add_f32 v{acc}, 0x3727c5ac, v{acc}")
    a(f"v_cvt_pk_bf16_f32 v{tmp}, v{acc}, v{acc}")
    a(f"v_lshlrev_b32 v{acc}, 16, v{tmp}")
    a(f"v_sqrt_f32 v{acc}, v{acc}")
    a("s_nop 0")
    a(f"v_cvt_pk_bf16_f32 v{tmp}, v{acc}, v{acc}")
    a(f"v_lshlrev_b32 v{acc}, 16, v{tmp}")
    a(f"v_rcp_f32 v{sd}, v{acc}")
    for i in range(8):
        a(f"v_sub_f32 v{f + i}, v{f + i}, v{mean}")
    for i in range(4):
        a(f"v_cvt_pk_bf16_f32 v{tmp}, v{f + 2 * i}, v{f + 2 * i + 1}")
        a(f"v_lshlrev_b32 v{f + 2 * i}, 16, v{tmp}")
        a(f"v_and_b32 v{f + 2 * i + 1}, 0xffff0000, v{tmp}")
    for i in range(8):
        a(f"v_mul_f32 v{f + i}, v{f + i}, v{sd}")
    for i in range(4):
        a(f"v_cvt_pk_bf16_f32 v{out_regs + i}, v{f + 2 * i}, v{f + 2 * i + 1}")


def plain_pack(a, c, pool):
    state = {"i": 0}

    def fn(nb, mt, j):
        p = pool[state["i"] % len(pool)]
        state["i"] += 1
        r = c.acc(nb, mt) + 4 * j
        a(f"v_cvt_pk_bf16_f32 v{p}, v{r}, v{r + 1}")
        a(f"v_cvt_pk_bf16_f32 v{p + 1}, v{r + 2}, v{r + 3}")
        return p
    return fn


def head_store_epilogue(a, c, srd_out, s_rowbase_bytes):
    a("s_barrier")
    pool = [c.v_A + 2 * i for i in range(c.NT * 4)]
    RBo, region = epilogue_to_lds(a, c, c.NT, plain_pack(a, c, pool))
    nad, rpi = epilogue_read_addrs(a, c, RBo, region, c.v_va)
    L = c.v_lane
    t = c.v_t
    cpr = RBo // 16
    lg = cpr.bit_length() - 1
    a(f"v_lshrrev_b32 v{t}, {lg}, v{L}")
    a(f"v_lshlrev_b32 v{t}, 8, v{t}")
    a(f"v_and_b32 v{t + 1}, {cpr - 1}, v{L}")
    a(f"v_lshl_add_u32 v{c.v_x}, v{t + 1}, 4, v{t}")
    a("s_waitcnt lgkmcnt(0)")
    nins = c.TM // rpi
    for i in range(nins):
        a(f"ds_read_b128 {vr(c.v_acc + 4 * i, 4)}, v{c.v_va + (i % nad)} offset:{i * rpi * RBo}")
    for i in range(nins):
        a(f"s_waitcnt lgkmcnt({min(15, nins - 1 - i)})")
        a(f"s_add_u32 s{S_T0}, s{s_rowbase_bytes}, {i * rpi * 256}")
        a(f"buffer_store_dwordx4 {vr(c.v_acc + 4 * i, 4)}, v{c.v_x}, s[{srd_out}:{srd_out + 3}], s{S_T0} offen")


def gen_kv_kernel(a):
    name = "kv_kernel"
    c = GemmCfg(BM=256, BN=256, WM=4, WN=2, K=512, lda=1024, ldb=8192)
    kernel_header(a, name)
    end = a.uid("end")
    a("s_cmp_ge_u32 s2, 256")
    a(f"s_cbranch_scc1 {end}")
    a(f"s_load_dwordx4 s[36:39], s[0:1], {KA_X}")
    a(f"s_load_dwordx4 s[40:43], s[0:1], {KA_WUK}")
    a(f"s_load_dwordx2 s[44:45], s[0:1], {KA_WS}")
    a("s_and_b32 s46, s2, 7")
    a("s_lshl_b32 s46, s46, 2")
    a("s_bfe_u32 s47, s2, 0x20003")
    a("s_add_u32 s46, s46, s47")
    a("s_lshr_b32 s47, s2, 5")
    a("s_lshl_b32 s47, s47, 8")
    a("s_and_b32 s48, s46, 15")
    a("s_lshl_b32 s48, s48, 8")
    a("s_waitcnt lgkmcnt(0)")
    make_srd(a, S_SRD_X, 38, 0, 2 * MB)
    a("s_cmp_lt_u32 s46, 16")
    a("s_cselect_b32 s8, s40, s42")
    a("s_cselect_b32 s9, s41, s43")
    a(f"s_mov_b32 s10, {4 * MB}")
    a("s_mov_b32 s11, 0x00020000")
    a(f"s_mov_b32 s50, {WS_V}")
    a(f"s_cselect_b32 s49, {WS_K}, s50")
    a("s_add_u32 s16, s44, s49")
    a("s_addc_u32 s17, s45, 0")
    a(f"s_mov_b32 s18, {16 * MB}")
    a("s_mov_b32 s19, 0x00020000")
    gemm_setup(a, c, 47, [48])
    gemm_dma(a, c, 0)
    make_srd(a, 52, 36, 0, 2 * MB)
    make_srd(a, 56, 44, WS_XN, 2 * MB)
    a("s_lshl_b32 s50, s2, 3")
    a(f"s_add_u32 s50, s50, s{S_WAVE}")
    a("s_lshl_b32 s50, s50, 10")
    vt = c.v_acc
    a(f"v_lshlrev_b32 v{vt + 20}, 4, v{c.v_lane}")
    a(f"buffer_load_dwordx4 {vr(vt + 16, 4)}, v{vt + 20}, s[52:55], s50 offen")
    gemm_read_addrs(a, c)
    a("s_waitcnt vmcnt(0)")
    ln_row(a, vt + 16, vt, 60, vt + 24)
    a(f"buffer_store_dwordx4 {vr(vt + 24, 4)}, v{vt + 20}, s[56:59], s50 offen")
    a("s_nop 1")
    gemm_zero_acc(a, c)
    gemm_mainloop(a, c)
    a("s_lshr_b32 s50, s48, 7")
    a(f"s_add_u32 s50, s50, s{S_WN}")
    a("s_lshl_b32 s50, s50, 19")
    a(f"s_mul_i32 s51, s{S_WM}, {c.TM}")
    a("s_add_u32 s51, s51, s47")
    a("s_lshl_b32 s51, s51, 8")
    a("s_add_u32 s50, s50, s51")
    head_store_epilogue(a, c, 16, 50)
    a.label(end)
    a("s_endpgm")
    return name, c.v_end, 2 * c.STAGE


def gen_q_kernel(a):
    name = "q_kernel"
    c = GemmCfg(BM=128, BN=256, WM=2, WN=4, K=512, lda=1024, ldb=8192)
    kernel_header(a, name)
    end = a.uid("end")
    a("s_cmp_ge_u32 s2, 256")
    a(f"s_cbranch_scc1 {end}")
    a(f"s_load_dwordx2 s[40:41], s[0:1], {KA_WQ}")
    a(f"s_load_dwordx2 s[44:45], s[0:1], {KA_WS}")
    a("s_and_b32 s46, s2, 7")
    a("s_lshl_b32 s46, s46, 1")
    a("s_bfe_u32 s47, s2, 0x10003")
    a("s_add_u32 s46, s46, s47")
    a("s_lshr_b32 s47, s2, 4")
    a("s_lshl_b32 s47, s47, 7")
    a("s_lshl_b32 s48, s46, 8")
    a("s_waitcnt lgkmcnt(0)")
    make_srd(a, S_SRD_X, 44, WS_XN, 2 * MB)
    make_srd(a, S_SRD_W, 40, 0, 4 * MB)
    make_srd(a, 16, 44, WS_Q, 16 * MB)
    gemm_setup(a, c, 47, [48])
    gemm_dma(a, c, 0)
    gemm_read_addrs(a, c)
    gemm_zero_acc(a, c)
    gemm_mainloop(a, c)
    a(f"s_lshl_b32 s50, s{S_WN}, 6")
    a("s_add_u32 s50, s50, s48")
    a("s_lshr_b32 s51, s50, 7")
    a("s_lshl_b32 s51, s51, 19")
    a("s_and_b32 s50, s50, 127")
    a("s_lshl_b32 s50, s50, 1")
    a("s_add_u32 s50, s50, s51")
    a(f"s_mul_i32 s51, s{S_WM}, {c.TM}")
    a("s_add_u32 s51, s51, s47")
    a("s_lshl_b32 s51, s51, 8")
    a("s_add_u32 s50, s50, s51")
    head_store_epilogue(a, c, 16, 50)
    a.label(end)
    a("s_endpgm")
    return name, c.v_end, 2 * c.STAGE


def gen_oproj_kernel(a):
    name = "oproj_kernel"
    c = GemmCfg(BM=128, BN=128, WM=2, WN=4, K=1024, lda=8192, ldb=1024)
    kernel_header(a, name)
    end = a.uid("end")
    a("s_cmp_ge_u32 s2, 256")
    a(f"s_cbranch_scc1 {end}")
    a(f"s_load_dwordx2 s[40:41], s[0:1], {KA_WO}")
    a(f"s_load_dwordx2 s[44:45], s[0:1], {KA_WS}")
    a("s_and_b32 s46, s2, 7")
    a("s_lshl_b32 s46, s46, 1")
    a("s_bfe_u32 s47, s2, 0x10003")
    a("s_add_u32 s46, s46, s47")
    a("s_lshl_b32 s47, s46, 7")
    a("s_bfe_u32 s48, s2, 0x20004")
    a("s_lshl_b32 s48, s48, 7")
    a("s_lshr_b32 s49, s2, 6")
    a("s_lshl_b32 s50, s49, 10")
    a("s_waitcnt lgkmcnt(0)")
    make_srd(a, S_SRD_X, 44, WS_CTX, 16 * MB)
    make_srd(a, S_SRD_W, 40, 0, 4 * MB)
    make_srd(a, 16, 44, WS_PART, 16 * MB)
    gemm_setup(a, c, 47, [48], 50)
    gemm_dma(a, c, 0)
    gemm_read_addrs(a, c)
    gemm_zero_acc(a, c)
    gemm_mainloop(a, c)
    L, t = c.v_lane, c.v_t
    RBo = c.TN * 4
    region = c.TM * RBo
    a("s_barrier")
    a(f"v_and_b32 v{t}, 31, v{L}")
    a(f"v_lshlrev_b32 v{t + 1}, 7, v{t}")
    a(f"s_mul_i32 s{S_T0}, s{S_WAVE}, {region}")
    a(f"v_add_u32 v{t + 1}, s{S_T0}, v{t + 1}")
    a(f"v_bfe_u32 v{t + 2}, v{t}, 1, 3")
    a(f"v_lshrrev_b32 v{t + 3}, 5, v{L}")
    a(f"v_xor_b32 v{t + 2}, v{t + 2}, v{t + 3}")
    a(f"v_lshlrev_b32 v{t + 2}, 4, v{t + 2}")
    for j in range(4):
        a(f"v_xor_b32 v{t + 3}, {(2 * j) << 4}, v{t + 2}")
        a(f"v_add_u32 v{t + 3}, v{t + 3}, v{t + 1}")
        for mt in range(c.MT):
            a(f"ds_write_b128 v{t + 3}, {vr(c.acc(0, mt) + 4 * j, 4)} offset:{mt * 32 * RBo}")
    nad, rpi = epilogue_read_addrs(a, c, RBo, region, c.v_va)
    a(f"v_lshrrev_b32 v{t}, 3, v{L}")
    a(f"v_lshlrev_b32 v{t}, 11, v{t}")
    a(f"v_and_b32 v{t + 1}, 7, v{L}")
    a(f"v_lshl_add_u32 v{c.v_x}, v{t + 1}, 4, v{t}")
    a("s_lshl_b32 s50, s49, 22")
    a(f"s_mul_i32 s51, s{S_WM}, {c.TM}")
    a("s_add_u32 s51, s51, s47")
    a("s_lshl_b32 s51, s51, 11")
    a("s_add_u32 s50, s50, s51")
    a(f"s_lshl_b32 s51, s{S_WN}, 5")
    a("s_add_u32 s51, s51, s48")
    a("s_lshl_b32 s51, s51, 2")
    a("s_add_u32 s50, s50, s51")
    a("s_waitcnt lgkmcnt(0)")
    nins = c.TM // rpi
    for i in range(nins):
        a(f"ds_read_b128 {vr(c.v_acc + 4 * i, 4)}, v{c.v_va + (i % nad)} offset:{i * rpi * RBo}")
    for i in range(nins):
        a(f"s_waitcnt lgkmcnt({min(15, nins - 1 - i)})")
        a(f"s_add_u32 s{S_T0}, s50, {i * rpi * 2048}")
        a(f"buffer_store_dwordx4 {vr(c.v_acc + 4 * i, 4)}, v{c.v_x}, s[16:19], s{S_T0} offen")
    a.label(end)
    a("s_endpgm")
    return name, c.v_end, 2 * c.STAGE


def gen_redln_kernel(a):
    name = "redln_kernel"
    kernel_header(a, name)
    end = a.uid("end")
    a("s_cmp_ge_u32 s2, 512")
    a(f"s_cbranch_scc1 {end}")
    a(f"s_load_dwordx2 s[36:37], s[0:1], {KA_X}")
    a(f"s_load_dwordx2 s[44:45], s[0:1], {KA_WS}")
    a("v_and_b32 v1, 63, v0")
    a("v_lshrrev_b32 v2, 6, v0")
    a("s_nop 0")
    a("v_readfirstlane_b32 s24, v2")
    a("s_nop 3")
    a("s_lshl_b32 s25, s2, 2")
    a("s_add_u32 s25, s25, s24")
    a("s_lshl_b32 s26, s25, 10")
    a("s_lshl_b32 s27, s25, 11")
    a("s_waitcnt lgkmcnt(0)")
    make_srd(a, 4, 36, 0, 2 * MB)
    make_srd(a, 8, 44, WS_PART, 16 * MB)
    make_srd(a, 12, 44, WS_H, 2 * MB)
    make_srd(a, 16, 44, WS_HN, 2 * MB)
    a("v_lshlrev_b32 v3, 4, v1")
    a("v_lshlrev_b32 v4, 5, v1")
    a("buffer_load_dwordx4 v[8:11], v3, s[4:7], s26 offen")
    for ks in range(4):
        a(f"s_add_u32 s28, s27, {ks * 4 * MB}")
        a(f"buffer_load_dwordx4 {vr(16 + 8 * ks, 4)}, v4, s[8:11], s28 offen")
        a(f"buffer_load_dwordx4 {vr(20 + 8 * ks, 4)}, v4, s[8:11], s28 offen offset:16")
    a("s_waitcnt vmcnt(0)")
    for i in range(8):
        a(f"v_add_f32 v{16 + i}, v{16 + i}, v{24 + i}")
        a(f"v_add_f32 v{32 + i}, v{32 + i}, v{40 + i}")
        a(f"v_add_f32 v{16 + i}, v{16 + i}, v{32 + i}")
    for i in range(4):
        a(f"v_cvt_pk_bf16_f32 v{24 + i}, v{16 + 2 * i}, v{17 + 2 * i}")
    for i in range(4):
        a(f"v_lshlrev_b32 v{16 + 2 * i}, 16, v{24 + i}")
        a(f"v_and_b32 v{17 + 2 * i}, 0xffff0000, v{24 + i}")
        a(f"v_lshlrev_b32 v{32 + 2 * i}, 16, v{8 + i}")
        a(f"v_and_b32 v{33 + 2 * i}, 0xffff0000, v{8 + i}")
    for i in range(8):
        a(f"v_add_f32 v{16 + i}, v{16 + i}, v{32 + i}")
    for i in range(4):
        a(f"v_cvt_pk_bf16_f32 v{8 + i}, v{16 + 2 * i}, v{17 + 2 * i}")
    a("buffer_store_dwordx4 v[8:11], v3, s[12:15], s26 offen")
    ln_row(a, 8, 16, 60, 40)
    a("buffer_store_dwordx4 v[40:43], v3, s[16:19], s26 offen")
    a.label(end)
    a("s_endpgm")
    return name, 48, 0


def rowmajor_store(a, c, nblocks, src_fn, srd_out, s_base, ld_out, resid=None):
    a("s_barrier")
    RBo, region = epilogue_to_lds(a, c, nblocks, src_fn)
    nad, rpi = epilogue_read_addrs(a, c, RBo, region, c.v_va)
    L, t = c.v_lane, c.v_t
    cpr = RBo // 16
    lg = cpr.bit_length() - 1
    a(f"v_lshrrev_b32 v{t}, {lg}, v{L}")
    a(f"s_mov_b32 s{S_T0}, {ld_out}")
    a(f"v_mul_lo_u32 v{t}, v{t}, s{S_T0}")
    a(f"v_and_b32 v{t + 1}, {cpr - 1}, v{L}")
    a(f"v_lshl_add_u32 v{c.v_x}, v{t + 1}, 4, v{t}")
    nins = c.TM // rpi
    R = c.v_acc
    if resid is not None:
        for i in range(nins):
            a(f"s_add_u32 s{S_T0}, s{s_base}, {i * rpi * ld_out}")
            a(f"buffer_load_dwordx4 {vr(R + 4 * nins + 4 * i, 4)}, v{c.v_x}, s[{resid}:{resid + 3}], s{S_T0} offen")
    a("s_waitcnt lgkmcnt(0)")
    for i in range(nins):
        a(f"ds_read_b128 {vr(R + 4 * i, 4)}, v{c.v_va + (i % nad)} offset:{i * rpi * RBo}")
    if resid is not None:
        a("s_waitcnt vmcnt(0) lgkmcnt(0)")
        for i in range(nins):
            for q in range(4):
                x0 = R + 4 * i + q
                y0 = R + 4 * nins + 4 * i + q
                a(f"v_lshlrev_b32 v{t}, 16, v{x0}")
                a(f"v_and_b32 v{t + 1}, 0xffff0000, v{x0}")
                a(f"v_lshlrev_b32 v{t + 2}, 16, v{y0}")
                a(f"v_and_b32 v{t + 3}, 0xffff0000, v{y0}")
                a(f"v_add_f32 v{t}, v{t}, v{t + 2}")
                a(f"v_add_f32 v{t + 1}, v{t + 1}, v{t + 3}")
                a(f"v_cvt_pk_bf16_f32 v{x0}, v{t}, v{t + 1}")
    for i in range(nins):
        if resid is None:
            a(f"s_waitcnt lgkmcnt({min(15, nins - 1 - i)})")
        a(f"s_add_u32 s{S_T0}, s{s_base}, {i * rpi * ld_out}")
        a(f"buffer_store_dwordx4 {vr(R + 4 * i, 4)}, v{c.v_x}, s[{srd_out}:{srd_out + 3}], s{S_T0} offen")


def gen_glu_kernel(a):
    name = "glu_kernel"
    c = GemmCfg(BM=128, BN=256, WM=2, WN=4, K=512, lda=1024, ldb=3584, nsub=2)
    kernel_header(a, name)
    end = a.uid("end")
    a("s_cmp_ge_u32 s2, 224")
    a(f"s_cbranch_scc1 {end}")
    a(f"s_load_dwordx4 s[40:43], s[0:1], {KA_WG}")
    a(f"s_load_dwordx2 s[44:45], s[0:1], {KA_WS}")
    a("s_and_b32 s47, s2, 15")
    a("s_lshl_b32 s47, s47, 7")
    a("s_lshr_b32 s48, s2, 4")
    a("s_lshl_b32 s48, s48, 7")
    a("s_waitcnt lgkmcnt(0)")
    make_srd(a, S_SRD_X, 44, WS_HN, 2 * MB)
    make_srd(a, S_SRD_W, 40, 0, 512 * 1792 * 2)
    make_srd(a, S_SRD_W + 4, 42, 0, 512 * 1792 * 2)
    make_srd(a, 16, 44, WS_HH, 2048 * 1792 * 2)
    gemm_setup(a, c, 47, [48, 48])
    gemm_dma(a, c, 0)
    gemm_read_addrs(a, c)
    gemm_zero_acc(a, c)
    gemm_mainloop(a, c)
    a(f"s_mul_i32 s50, s{S_WM}, {c.TM}")
    a("s_add_u32 s50, s50, s47")
    a("s_mul_i32 s50, s50, 3584")
    a(f"s_lshl_b32 s51, s{S_WN}, 5")
    a("s_add_u32 s51, s51, s48")
    a("s_lshl_b32 s51, s51, 1")
    a("s_add_u32 s50, s50, s51")
    a(f"s_mov_b32 s52, 0xbfb8aa3b")
    pool = [c.v_A + 2 * i for i in range(4)]
    tmp = c.v_A + 8
    st = {"i": 0}

    def src(nb, mt, j):
        p = pool[st["i"] % len(pool)]
        st["i"] += 1
        g = c.acc(0, mt) + 4 * j
        u = c.acc(1, mt) + 4 * j
        for half in range(2):
            g0, g1, u0, u1 = g + 2 * half, g + 2 * half + 1, u + 2 * half, u + 2 * half + 1
            a(f"v_cvt_pk_bf16_f32 v{tmp}, v{g0}, v{g1}")
            a(f"v_cvt_pk_bf16_f32 v{tmp + 1}, v{u0}, v{u1}")
            a(f"v_lshlrev_b32 v{g0}, 16, v{tmp}")
            a(f"v_and_b32 v{g1}, 0xffff0000, v{tmp}")
            a(f"v_mul_f32 v{g0}, s52, v{g0}")
            a(f"v_mul_f32 v{g1}, s52, v{g1}")
            a(f"v_exp_f32 v{g0}, v{g0}")
            a(f"v_exp_f32 v{g1}, v{g1}")
            a(f"v_lshlrev_b32 v{u0}, 16, v{tmp + 1}")
            a(f"v_and_b32 v{u1}, 0xffff0000, v{tmp + 1}")
            a(f"v_add_f32 v{g0}, 1.0, v{g0}")
            a(f"v_add_f32 v{g1}, 1.0, v{g1}")
            a(f"v_rcp_f32 v{g0}, v{g0}")
            a(f"v_rcp_f32 v{g1}, v{g1}")
            a("s_nop 0")
            a(f"v_cvt_pk_bf16_f32 v{tmp}, v{g0}, v{g1}")
            a(f"v_lshlrev_b32 v{g0}, 16, v{tmp}")
            a(f"v_and_b32 v{g1}, 0xffff0000, v{tmp}")
            a(f"v_mul_f32 v{g0}, v{g0}, v{u0}")
            a(f"v_mul_f32 v{g1}, v{g1}, v{u1}")
            a(f"v_cvt_pk_bf16_f32 v{p + half}, v{g0}, v{g1}")
        return p
    rowmajor_store(a, c, 1, src, 16, 50, 3584)
    a.label(end)
    a("s_endpgm")
    return name, c.v_end, 2 * c.STAGE


def gen_down_kernel(a):
    name = "down_kernel"
    c = GemmCfg(BM=64, BN=64, WM=2, WN=2, K=1792, lda=3584, ldb=1024)
    kernel_header(a, name)
    end = a.uid("end")
    a("s_cmp_ge_u32 s2, 256")
    a(f"s_cbranch_scc1 {end}")
    a(f"s_load_dwordx4 s[40:43], s[0:1], {KA_WD}")
    a(f"s_load_dwordx2 s[44:45], s[0:1], {KA_WS}")
    a("s_and_b32 s46, s2, 7")
    a("s_lshl_b32 s46, s46, 2")
    a("s_bfe_u32 s47, s2, 0x20003")
    a("s_add_u32 s46, s46, s47")
    a("s_lshl_b32 s47, s46, 6")
    a("s_lshr_b32 s48, s2, 5")
    a("s_lshl_b32 s48, s48, 6")
    a("s_waitcnt lgkmcnt(0)")
    make_srd(a, S_SRD_X, 44, WS_HH, 2048 * 1792 * 2)
    make_srd(a, S_SRD_W, 40, 0, 1792 * 512 * 2)
    make_srd(a, 16, 42, 0, 2 * MB)
    make_srd(a, 20, 44, WS_H, 2 * MB)
    gemm_setup(a, c, 47, [48])
    gemm_dma(a, c, 0)
    gemm_read_addrs(a, c)
    gemm_zero_acc(a, c)
    gemm_mainloop(a, c)
    a(f"s_mul_i32 s50, s{S_WM}, {c.TM}")
    a("s_add_u32 s50, s50, s47")
    a("s_lshl_b32 s50, s50, 10")
    a(f"s_lshl_b32 s51, s{S_WN}, 5")
    a("s_add_u32 s51, s51, s48")
    a("s_lshl_b32 s51, s51, 1")
    a("s_add_u32 s50, s50, s51")
    pool = [c.v_A + 2 * i for i in range(4)]
    rowmajor_store(a, c, 1, plain_pack(a, c, pool), 16, 50, 1024, resid=20)
    a.label(end)
    a("s_endpgm")
    return name, max(c.v_end, c.v_acc + 16), 2 * c.STAGE


HEADER = open("sequential_preLN__compressed_kv_cla__glu_gated_glu__prompt.s.ref").read().split("; Override launch")[0]


def build(kernels):
    a = Asm()
    a.raw('.amdgcn_target "amdgcn-amd-amdhsa--gfx950"')
    a.raw(".text")
    infos = []
    for g, grid, block in kernels:
        name, nv, lds = g(a)
        infos.append((name, nv, lds, grid, block))
    a.raw('.section .rodata,"a"')
    for name, nv, lds, grid, block in infos:
        kernel_descriptor(a, name, nv)
    head = HEADER
    for name, nv, lds, grid, block in infos:
        head += f"; @launch kernel={name} grid=({grid},1,1) block=({block},1,1) lds={lds}\n"
    return head + a.text()


if __name__ == "__main__":
    ks = [(gen_kv_kernel, 256, 512), (gen_q_kernel, 256, 512),
          (lambda a: gen_attn_kernel(a, WS_Q, WS_K, WS_V, WS_CTX, KA_WS), 256, 512),
          (gen_oproj_kernel, 256, 512), (gen_redln_kernel, 512, 256), (gen_glu_kernel, 224, 512),
          (gen_down_kernel, 256, 256)]
    out = build(ks)
    open("sequential_preLN__compressed_kv_cla__glu_gated_glu__prompt.s", "w").write(out)
    print("written", len(out))
```

```python
import os
from asmlib import *
from gemm import epilogue_to_lds, epilogue_read_addrs, S_WAVE, S_T0, S_T1

MB = 1 << 20
FLAGS = set(os.environ.get("GENFLAGS", "").split(","))


class Shim:
    pass


class LdsTrack:
    def __init__(self, a):
        self.a = a
        self.q = []
        self.done = -1

    def read(self, text, tag):
        if "a_nolds" not in FLAGS:
            self.a(text)
        self.q.append(tag)

    def wait(self, tag):
        idx = max(i for i, t in enumerate(self.q) if t == tag)
        if idx <= self.done:
            return
        n = len(self.q) - 1 - idx
        n = min(n, 15)
        self.a(f"s_waitcnt lgkmcnt({n})")
        self.done = len(self.q) - 1 - n


def gen_attn_kernel(a, WS_Q, WS_K, WS_V, WS_CTX, KA_WS):
    name = "attn_kernel"
    kernel_header(a, name)
    end = a.uid("end")
    L = 1
    T = 2
    V_DK = 12
    V_DV = 13
    V_KA = 14
    V_VA = 22
    V_M = 26
    V_L = 27
    V_AL = 28
    V_MQ = 29
    V_QO = 30
    V_NEG = 31
    V_Q = 32
    V_O = 64
    V_S = 128
    NF = 6
    V_KF = 192
    V_VF = 216
    V_NM = 240
    V_END = 256
    S_G, S_WQ, S_HB, S_QB, S_N, S_KO, S_I, S_C, S_M0, S_PH, S_VO = 34, 35, 36, 37, 38, 39, 40, 41, 42, 43, 52
    S_MASK = 44
    S_XO, S_XP, S_KF = 53, 63, 64

    a("s_cmp_ge_u32 s2, 256")
    a(f"s_cbranch_scc1 {end}")
    a(f"s_load_dwordx2 s[20:21], s[0:1], {KA_WS}")
    a(f"v_and_b32 v{L}, 63, v0")
    a(f"v_lshrrev_b32 v{T}, 6, v0")
    a("s_nop 0")
    a(f"v_readfirstlane_b32 s{S_WAVE}, v{T}")
    a("s_nop 3")
    a(f"s_lshr_b32 s{S_G}, s{S_WAVE}, 2")
    a(f"s_and_b32 s{S_WQ}, s{S_WAVE}, 3")
    a(f"s_and_b32 s{S_HB}, s2, 7")
    a(f"s_lshl_b32 s{S_HB}, s{S_HB}, 2")
    a(f"s_bfe_u32 s{S_T0}, s2, 0x20003")
    a(f"s_add_u32 s{S_HB}, s{S_HB}, s{S_T0}")
    a(f"s_lshl_b32 s22, s{S_HB}, 8")
    a(f"s_lshl_b32 s{S_HB}, s{S_HB}, 19")
    a("s_lshr_b32 s23, s2, 5")
    a(f"s_mov_b32 s{S_C}, 0x41f00000")
    a(f"s_lshl_b32 s{S_M0}, s{S_G}, 16")
    a(f"s_lshl_b32 s{S_T0}, s{S_WQ}, 10")
    a(f"s_add_u32 s{S_M0}, s{S_M0}, s{S_T0}")
    a("s_waitcnt lgkmcnt(0)")
    make_srd(a, 4, 20, WS_Q, 16 * MB)
    make_srd(a, 8, 20, WS_K, 16 * MB)
    make_srd(a, 12, 20, WS_V, 16 * MB)
    make_srd(a, 16, 20, WS_CTX, 16 * MB)
    a(f"v_lshrrev_b32 v{T}, 4, v{L}")
    a(f"v_and_b32 v{T + 1}, 15, v{L}")
    a(f"s_lshl_b32 s{S_T0}, s{S_WQ}, 2")
    a(f"v_add_u32 v{T + 2}, s{S_T0}, v{T}")
    a(f"v_xor_b32 v{T + 2}, v{T + 2}, v{T + 1}")
    a(f"v_lshlrev_b32 v{T + 2}, 4, v{T + 2}")
    a(f"v_lshl_add_u32 v{V_DK}, v{T}, 8, v{T + 2}")
    a(f"v_lshlrev_b32 v{T + 2}, 2, v{T}")
    a(f"v_xor_b32 v{T + 2}, v{T + 2}, v{T + 1}")
    a(f"v_lshlrev_b32 v{T + 2}, 4, v{T + 2}")
    a(f"v_lshl_add_u32 v{V_DV}, v{T}, 8, v{T + 2}")
    a(f"v_and_b32 v{T}, 31, v{L}")
    a(f"v_and_b32 v{T + 1}, 15, v{L}")
    a(f"v_lshrrev_b32 v{T + 2}, 5, v{L}")
    a(f"v_xor_b32 v{T + 1}, v{T + 1}, v{T + 2}")
    a(f"v_lshlrev_b32 v{T}, 8, v{T}")
    a(f"s_lshl_b32 s{S_T0}, s{S_G}, 16")
    a(f"v_add_u32 v{T}, s{S_T0}, v{T}")
    for s in range(8):
        a(f"v_xor_b32 v{T + 3}, {2 * s}, v{T + 1}")
        a(f"v_lshl_add_u32 v{V_KA + s}, v{T + 3}, 4, v{T}")
    a(f"v_and_b32 v{T}, 15, v{L}")
    a(f"v_lshrrev_b32 v{T + 1}, 2, v{T}")
    a(f"v_and_b32 v{T + 2}, 3, v{T}")
    a(f"v_lshrrev_b32 v{T + 3}, 5, v{L}")
    a(f"v_lshl_add_u32 v{T + 3}, v{T + 3}, 2, v{T + 1}")
    a(f"v_lshlrev_b32 v{T + 3}, 8, v{T + 3}")
    a(f"v_and_b32 v{T + 4}, 1, v{T + 2}")
    a(f"v_lshl_add_u32 v{T + 3}, v{T + 4}, 3, v{T + 3}")
    a(f"v_lshrrev_b32 v{T + 4}, 1, v{T + 2}")
    a(f"v_bfe_u32 v{T + 5}, v{L}, 4, 1")
    a(f"v_lshl_add_u32 v{T + 4}, v{T + 5}, 1, v{T + 4}")
    a(f"v_lshl_add_u32 v{T + 3}, v{T + 4}, 4, v{T + 3}")
    a(f"s_add_u32 s{S_T0}, s{S_T0}, 16384")
    a(f"v_add_u32 v{T + 3}, s{S_T0}, v{T + 3}")
    for db in range(4):
        a(f"v_xor_b32 v{T + 4}, {db}, v{T + 1}")
        a(f"v_lshl_add_u32 v{V_VA + db}, v{T + 4}, 6, v{T + 3}")
    a(f"v_and_b32 v{T}, 31, v{L}")
    a(f"s_lshl_b32 s{S_T0}, s{S_WQ}, 5")
    a(f"s_lshl_b32 s{S_T1}, s{S_G}, 6")
    a(f"s_sub_u32 s{S_T0}, s{S_T0}, s{S_T1}")
    a(f"v_add_u32 v{T}, s{S_T0}, v{T}")
    a(f"v_lshrrev_b32 v{T + 1}, 5, v{L}")
    a(f"v_lshlrev_b32 v{T + 1}, 2, v{T + 1}")
    a(f"v_sub_u32 v{V_MQ}, v{T}, v{T + 1}")
    a(f"v_and_b32 v{T}, 31, v{L}")
    a(f"v_lshrrev_b32 v{T + 1}, 5, v{L}")
    a(f"v_lshlrev_b32 v{T + 1}, 4, v{T + 1}")
    a(f"v_lshl_add_u32 v{V_QO}, v{T}, 8, v{T + 1}")
    a(f"v_mov_b32 v{V_NEG}, 0xf149f2ca")
    a(f"s_mov_b32 s{S_PH}, 0")
    a(f"s_sub_u32 s{S_QB}, 15, s23")

    def dma(which, buf):
        if "a_nodma" in FLAGS:
            return
        vo, srd, so = ((V_DK, 8, S_KO), (V_DV, 12, S_VO))[which]
        for t in range(4):
            a(f"s_add_u32 m0, s{S_M0}, {buf * 32768 + which * 16384 + t * 4096}")
            if t == 0:
                a("s_nop 0")
                a(f"buffer_load_dwordx4 v{vo}, s[{srd}:{srd + 3}], s{so} offen lds")
            else:
                a(f"s_add_u32 s{S_T0}, s{so}, {t * 4096}")
                a(f"buffer_load_dwordx4 v{vo}, s[{srd}:{srd + 3}], s{S_T0} offen lds")
        a(f"s_add_u32 s{so}, s{so}, 32768")

    def dma_piece(which, buf, t, cond):
        if "a_nodma" in FLAGS:
            return []
        vo, srd, so = ((V_DK, 8, S_KO), (V_DV, 12, S_VO))[which]
        ops = []
        lab = None
        if cond is not None:
            lab = a.uid("nop")
            ops.append(f"s_cmp_eq_u32 s{cond}, 0")
            ops.append(f"s_cbranch_scc1 {lab}")
        ops.append(f"s_add_u32 m0, s{S_M0}, {buf * 32768 + which * 16384 + t * 4096}")
        ops.append(f"s_add_u32 s{S_T0}, s{so}, {t * 4096}")
        ops.append(f"buffer_load_dwordx4 v{vo}, s[{srd}:{srd + 3}], s{S_T0} offen lds")
        if t == 3:
            ops.append(f"s_add_u32 s{so}, s{so}, 32768")
        if lab is not None:
            ops.append(lab + ":")
        return ops

    def emit(op):
        if op.endswith(":"):
            a.label(op[:-1])
        else:
            a(op)

    def exp_ops(Sp, lo, hi):
        ops = []
        G = 4
        prev = None
        for g0 in range(lo, hi, G):
            for r in range(g0, g0 + G):
                ops.append(f"v_exp_f32 v{Sp + r}, v{Sp + r}")
            if prev is not None:
                ops += adds_and_pack(Sp, prev, prev == 0)
            prev = g0
        ops.append("s_nop 0")
        ops += adds_and_pack(Sp, prev, prev == 0)
        if hi == 32:
            ops.append(f"v_add_f32 v{V_L}, v{V_L}, v{T + 8}")
            ops.append(f"v_add_f32 v{V_L}, v{V_L}, v{T + 9}")
        return ops

    def adds_and_pack(Sp, g0, first):
        ops = []
        if first:
            ops.append(f"v_add_f32 v{T + 8}, v{Sp + g0}, v{Sp + g0 + 1}")
            ops.append(f"v_add_f32 v{T + 9}, v{Sp + g0 + 2}, v{Sp + g0 + 3}")
        else:
            ops.append(f"v_add_f32 v{T + 8}, v{T + 8}, v{Sp + g0}")
            ops.append(f"v_add_f32 v{T + 9}, v{T + 9}, v{Sp + g0 + 1}")
            ops.append(f"v_add_f32 v{T + 8}, v{T + 8}, v{Sp + g0 + 2}")
            ops.append(f"v_add_f32 v{T + 9}, v{T + 9}, v{Sp + g0 + 3}")
        ops.append(f"v_cvt_pk_bf16_f32 v{Sp + g0 // 2}, v{Sp + g0}, v{Sp + g0 + 1}")
        ops.append(f"v_cvt_pk_bf16_f32 v{Sp + g0 // 2 + 1}, v{Sp + g0 + 2}, v{Sp + g0 + 3}")
        return ops

    def max_ops(Sc):
        ops = []
        ops.append(f"v_max3_f32 v{T}, v{Sc}, v{Sc + 1}, v{Sc + 2}")
        ops.append(f"v_max3_f32 v{T + 1}, v{Sc + 3}, v{Sc + 4}, v{Sc + 5}")
        for r in range(6, 30, 4):
            ops.append(f"v_max3_f32 v{T}, v{T}, v{Sc + r}, v{Sc + r + 1}")
            ops.append(f"v_max3_f32 v{T + 1}, v{T + 1}, v{Sc + r + 2}, v{Sc + r + 3}")
        ops.append(f"v_max3_f32 v{T}, v{T}, v{Sc + 30}, v{Sc + 31}")
        ops.append(f"v_max_f32 v{T}, v{T}, v{T + 1}")
        return ops

    def max_update(Sc, first):
        a(f"v_mov_b32 v{T + 1}, v{T}")
        a("s_nop 1")
        a(f"v_permlane32_swap_b32 v{T}, v{T + 1}")
        a(f"v_max_f32 v{T}, v{T}, v{T + 1}")
        if first:
            a(f"v_max_f32 v{T}, 0xe0ad78ec, v{T}")
        else:
            a(f"v_max_f32 v{T}, 0, v{T}")
        a(f"v_exp_f32 v{V_AL}, -v{T}")
        a(f"v_add_f32 v{V_M}, v{V_M}, v{T}")
        for r in range(32):
            a(f"v_sub_f32 v{Sc + r}, v{Sc + r}, v{T}")
        for r in range(16):
            a(f"v_sub_f32 v{V_NM + r}, 0, v{V_M}")
        if not first:
            a(f"v_mul_f32 v{V_L}, v{V_L}, v{V_AL}")
            for r in range(64):
                a(f"v_mul_f32 v{V_O + r}, v{V_O + r}, v{V_AL}")

    def v_read(tr, f, vbuf):
        ks, db = f // 4, f % 4
        F = V_VF + (f % NF) * 4
        tr.read(f"ds_read_b64_tr_b16 {vr(F, 2)}, v{V_VA + db} offset:{vbuf * 32768 + 16 * ks * 256}", ("v", f))
        tr.read(f"ds_read_b64_tr_b16 {vr(F + 2, 2)}, v{V_VA + db} offset:{vbuf * 32768 + (16 * ks + 8) * 256}", ("v", f))

    def k_read(tr, f, kbuf):
        kb, s = f % 2, f // 2
        F = V_KF + (f % NF) * 4
        tr.read(f"ds_read_b128 {vr(F, 4)}, v{V_KA + s} offset:{kbuf * 32768 + kb * 8192}", ("k", f))

    SPLIT = 24

    def iteration(par, do_qk, do_prev, may_mask, hook=None):
        Sc = V_S + 32 * par
        Sp = V_S + 32 * (par ^ 1)
        tr = LdsTrack(a)
        novalu = "a_novalu" in FLAGS
        va = exp_ops(Sp, 0, SPLIT) if (do_prev and not novalu) else []
        if do_qk:
            for f in range(NF):
                k_read(tr, f, par)
        elif do_prev:
            for f in range(NF):
                v_read(tr, f, par ^ 1)
        if hook is not None:
            hook()
        lead = 8 if do_qk else 0
        for op in va[:lead]:
            a(op)
        va = va[lead:]
        nm = 16 if do_qk else 0
        per = (len(va) + max(nm, 1) - 1) // max(nm, 1)
        xg = {f: [] for f in range(16)}
        if do_qk:
            for t in range(4):
                xg[2 * t] += dma_piece(0, par ^ 1, t, S_KF)
                xg[8 + 2 * t] += dma_piece(1, par, t, None)
        vi = 0
        for f in range(nm):
            kb, s = f % 2, f // 2
            tr.wait(("k", f))
            D = Sc + 16 * kb
            C = vr(V_NM, 16) if s == 0 else vr(D, 16)
            if "a_nomfma" not in FLAGS:
                a(f"v_mfma_f32_32x32x16_bf16 {vr(D, 16)}, {vr(V_KF + (f % NF) * 4, 4)}, {vr(V_Q + 4 * s, 4)}, {C}")
            if f + NF < 16:
                k_read(tr, f + NF, par)
            elif do_prev:
                v_read(tr, f + NF - 16, par ^ 1)
            for op in xg[f]:
                emit(op)
            for op in va[vi:vi + per]:
                a(op)
            vi += per
        for op in va[vi:]:
            a(op)
        if do_qk and may_mask:
            nomask = a.uid("nomask")
            a(f"s_cmp_lg_u32 s{S_KF}, 0")
            a(f"s_cbranch_scc1 {nomask}")
            a("s_nop 7")
            a("s_nop 3")
            for r0 in range(0, 32, 4):
                for i in range(4):
                    r = r0 + i
                    key = (r >> 4) * 32 + ((r & 15) >> 2) * 8 + (r & 3)
                    a(f"v_cmp_le_i32 s[{S_MASK + 2 * i}:{S_MASK + 2 * i + 1}], {key}, v{V_MQ}")
                a("s_nop 1")
                for i in range(4):
                    r = r0 + i
                    a(f"v_cndmask_b32 v{Sc + r}, v{V_NEG}, v{Sc + r}, s[{S_MASK + 2 * i}:{S_MASK + 2 * i + 1}]")
            a.label(nomask)
        vb = max_ops(Sc) if do_qk else []
        if not do_prev:
            a("s_nop 7")
            a("s_nop 3")
            for op in vb:
                a(op)
            max_update(Sc, True)
            return
        a("s_nop 1")
        gaps = {f: [] for f in range(16)}
        v2 = exp_ops(Sp, SPLIT, 32) if not novalu else []
        nks = SPLIT // 8
        span = list(range(0, 4 * nks - 1))
        per = (len(v2) + len(span) - 1) // len(span)
        for k, f in enumerate(span):
            gaps[f] += v2[k * per:(k + 1) * per]
        if do_qk:
            span = list(range(5, 14))
            per = (len(vb) + len(span) - 1) // len(span)
            for k, f in enumerate(span):
                gaps[f] += vb[k * per:(k + 1) * per]
            gaps[14].append(f"v_cmp_lt_f32 vcc, s{S_C}, v{T}")
        gaps[4 * nks - 1].append("s_nop 1")
        for f in range(16):
            ks, db = f // 4, f % 4
            tr.wait(("v", f))
            D = V_O + 16 * db
            if "a_nomfma" not in FLAGS:
                a(f"v_mfma_f32_32x32x16_bf16 {vr(D, 16)}, {vr(V_VF + (f % NF) * 4, 4)}, {vr(Sp + 4 * ks, 4)}, {vr(D, 16)}")
            if f + NF < 16:
                v_read(tr, f + NF, par ^ 1)
            for op in gaps[f]:
                a(op)
        if do_qk:
            skip = a.uid("norescale")
            a(f"s_cbranch_vccz {skip}")
            a("s_nop 7")
            a("s_nop 3")
            max_update(Sc, False)
            a.label(skip)

    def stamp(real=False):
        if "a_stamp" not in FLAGS:
            return
        sk = a.uid("nostamp")
        a(f"s_or_b32 s{S_T0}, s2, s{S_WAVE}")
        a(f"s_cmp_lg_u32 s{S_T0}, 0")
        a(f"s_cbranch_scc1 {sk}")
        a("s_memrealtime s[60:61]" if real else "s_memtime s[60:61]")
        a("s_waitcnt lgkmcnt(0)")
        a(f"v_mov_b32 v{T + 7}, s60")
        a(f"v_mov_b32 v{T + 6}, s62")
        a(f"buffer_store_dword v{T + 7}, v{T + 6}, s[56:59], 0 offen")
        a("s_add_u32 s62, s62, 4")
        a.label(sk)

    def iter_head(par, vm=0):
        a(f"s_waitcnt vmcnt({vm})")
        a("s_barrier")
        stamp()
        a(f"s_add_u32 s{S_T1}, s{S_I}, 1")
        a(f"s_cmp_lt_u32 s{S_T1}, s{S_N}")
        a(f"s_cselect_b32 s{S_KF}, 1, 0")

    def phase_loads(s_qb):
        a(f"s_lshl_b32 s{S_KO}, s{S_G}, 14")
        a(f"s_add_u32 s{S_KO}, s{S_KO}, s{S_HB}")
        a(f"s_lshl_b32 s{S_T0}, s{S_WQ}, 10")
        a(f"s_add_u32 s{S_KO}, s{S_KO}, s{S_T0}")
        a(f"s_mov_b32 s{S_VO}, s{S_KO}")
        dma(0, 0)
        a(f"s_lshl_b32 s{S_T0}, s{s_qb}, 7")
        a(f"s_lshl_b32 s{S_T1}, s{S_WQ}, 5")
        a(f"s_add_u32 s{S_T0}, s{S_T0}, s{S_T1}")
        a(f"s_lshl_b32 s{S_T0}, s{S_T0}, 8")
        a(f"s_add_u32 s{S_T0}, s{S_T0}, s{S_HB}")
        for s in range(8):
            a(f"buffer_load_dwordx4 {vr(V_Q + 4 * s, 4)}, v{V_QO}, s[4:7], s{S_T0} offen offset:{32 * s}")

    def next_phase_hook():
        sk = a.uid("nonext")
        a(f"s_cmp_lg_u32 s{S_PH}, 0")
        a(f"s_cbranch_scc1 {sk}")
        phase_loads(23)
        a.label(sk)

    if "a_stamp" in FLAGS:
        a("s_load_dwordx2 s[54:55], s[0:1], 88")
        a("s_waitcnt lgkmcnt(0)")
        make_srd(a, 56, 54, 0, 256)
        a("s_mov_b32 s62, 0")
    def wgstamp(slot):
        if "a_wgstamp" not in FLAGS:
            return
        sk = a.uid("nowgs")
        a(f"s_cmp_lg_u32 s{S_WAVE}, 0")
        a(f"s_cbranch_scc1 {sk}")
        a("s_memrealtime s[60:61]")
        make_srd(a, 56, 20, 200 * MB, 65536)
        a("s_waitcnt lgkmcnt(0)")
        a(f"v_mov_b32 v{T + 7}, s60")
        a(f"s_lshl_b32 s{S_T0}, s2, 4")
        a(f"s_add_u32 s{S_T0}, s{S_T0}, {slot * 4}")
        a(f"v_mov_b32 v{T + 6}, s{S_T0}")
        a(f"buffer_store_dword v{T + 7}, v{T + 6}, s[56:59], 0 offen")
        if slot == 0:
            a("s_getreg_b32 s60, hwreg(HW_REG_HW_ID)")
            a("s_getreg_b32 s61, hwreg(HW_REG_XCC_ID)")
            a(f"v_mov_b32 v{T + 7}, s60")
            a(f"buffer_store_dword v{T + 7}, v{T + 6}, s[56:59], 0 offen offset:8")
            a(f"v_mov_b32 v{T + 7}, s61")
            a(f"buffer_store_dword v{T + 7}, v{T + 6}, s[56:59], 0 offen offset:12")
        a.label(sk)
    wgstamp(0)
    phase_loads(S_QB)
    a(f"s_mul_i32 s{S_T0}, s{S_WQ}, 8704")
    a(f"s_add_u32 s{S_T0}, s{S_T0}, 16384")
    a(f"s_lshl_b32 s{S_T1}, s{S_G}, 16")
    a(f"s_add_u32 s{S_XO}, s{S_T0}, s{S_T1}")
    a(f"s_xor_b32 s{S_XP}, s{S_XO}, 65536")
    a("s_waitcnt vmcnt(0)")
    phase = a.uid("phase")
    a.label(phase)
    for r in range(64):
        a(f"v_mov_b32 v{V_O + r}, 0")
    for r in range(16):
        a(f"v_mov_b32 v{V_NM + r}, 0")
    a(f"v_mov_b32 v{V_M}, 0")
    a(f"v_mov_b32 v{V_L}, 0")
    a(f"s_add_u32 s{S_N}, s{S_QB}, 1")
    a(f"s_mov_b32 s{S_I}, 0")
    iter_head(0, 4)
    iteration(0, True, False, True)
    loop = a.uid("aloop")
    tail0 = a.uid("tail0")
    tail1 = a.uid("tail1")
    done = a.uid("adone")
    a.label(loop)
    a(f"s_add_u32 s{S_I}, s{S_I}, 1")
    a(f"s_cmp_ge_u32 s{S_I}, s{S_N}")
    a(f"s_cbranch_scc1 {tail1}")
    iter_head(1)
    iteration(1, True, True, True)
    a(f"s_add_u32 s{S_I}, s{S_I}, 1")
    a(f"s_cmp_ge_u32 s{S_I}, s{S_N}")
    a(f"s_cbranch_scc1 {tail0}")
    iter_head(0)
    iteration(0, True, True, True)
    a(f"s_branch {loop}")
    a.label(tail1)
    a("s_waitcnt vmcnt(0)")
    a("s_barrier")
    iteration(1, False, True, False, next_phase_hook)
    a(f"s_branch {done}")
    a.label(tail0)
    a("s_waitcnt vmcnt(0)")
    a("s_barrier")
    iteration(0, False, True, False, next_phase_hook)
    a.label(done)

    V_F = V_KF
    stamp()
    stamp(True)
    a("s_barrier")
    a(f"v_mov_b32 v{T}, v{V_L}")
    a("s_nop 1")
    a(f"v_permlane32_swap_b32 v{T}, v{V_L}")
    a(f"v_add_f32 v{V_L}, v{V_L}, v{T}")
    a(f"v_lshlrev_b32 v{T}, 4, v{L}")
    a(f"v_add_u32 v{T + 1}, s{S_XO}, v{T}")
    a(f"v_add_u32 v{T + 2}, s{S_XP}, v{T}")
    a(f"v_lshlrev_b32 v{T}, 2, v{L}")
    a(f"v_add_u32 v{T + 3}, s{S_XO}, v{T}")
    a(f"v_add_u32 v{T + 4}, s{S_XP}, v{T}")
    g1 = a.uid("g1")
    gj = a.uid("gj")
    a(f"s_cmp_eq_u32 s{S_G}, 1")
    a(f"s_cbranch_scc1 {g1}")
    for t in range(8):
        a(f"ds_write_b128 v{T + 1}, {vr(V_O + 32 + 4 * t, 4)} offset:{t * 1024}")
    a(f"s_branch {gj}")
    a.label(g1)
    for t in range(8):
        a(f"ds_write_b128 v{T + 1}, {vr(V_O + 4 * t, 4)} offset:{t * 1024}")
    for r in range(32):
        a(f"v_mov_b32 v{V_O + r}, v{V_O + 32 + r}")
    a.label(gj)
    a(f"ds_write_b32 v{T + 3}, v{V_M} offset:8192")
    a(f"ds_write_b32 v{T + 3}, v{V_L} offset:8448")
    a("s_waitcnt lgkmcnt(0)")
    a("s_barrier")
    for t in range(8):
        a(f"ds_read_b128 {vr(V_F + 4 * t, 4)}, v{T + 2} offset:{t * 1024}")
    a(f"ds_read_b32 v{T + 5}, v{T + 4} offset:8192")
    a(f"ds_read_b32 v{T + 6}, v{T + 4} offset:8448")
    a("s_waitcnt lgkmcnt(0)")
    a(f"v_max_f32 v{T}, v{V_M}, v{T + 5}")
    a(f"v_sub_f32 v{T + 1}, v{V_M}, v{T}")
    a(f"v_sub_f32 v{T + 2}, v{T + 5}, v{T}")
    a(f"v_exp_f32 v{T + 1}, v{T + 1}")
    a(f"v_exp_f32 v{T + 2}, v{T + 2}")
    a("s_nop 0")
    a(f"v_mul_f32 v{T + 3}, v{T + 1}, v{V_L}")
    a(f"v_fmac_f32 v{T + 3}, v{T + 2}, v{T + 6}")
    a(f"v_rcp_f32 v{T + 3}, v{T + 3}")
    a("s_nop 0")
    a(f"v_mul_f32 v{T + 1}, v{T + 1}, v{T + 3}")
    a(f"v_mul_f32 v{T + 2}, v{T + 2}, v{T + 3}")
    for r in range(32):
        a(f"v_mul_f32 v{V_O + r}, v{V_O + r}, v{T + 1}")
        a(f"v_fmac_f32 v{V_O + r}, v{V_F + r}, v{T + 2}")
    a("s_barrier")
    c = Shim()
    c.v_lane, c.v_t, c.TM, c.MT = L, T, 32, 1
    pool = [V_S + 32 + 2 * i for i in range(8)]
    st = {"i": 0}

    def src(nb, mt, j):
        p = pool[st["i"] % len(pool)]
        st["i"] += 1
        r = V_O + 16 * nb + 4 * j
        a(f"v_cvt_pk_bf16_f32 v{p}, v{r}, v{r + 1}")
        a(f"v_cvt_pk_bf16_f32 v{p + 1}, v{r + 2}, v{r + 3}")
        return p
    RBo, region = epilogue_to_lds(a, c, 2, src, S_XO)
    nad, rpi = epilogue_read_addrs(a, c, RBo, region, V_S, S_XO)
    a(f"v_lshrrev_b32 v{T}, 3, v{L}")
    a(f"v_lshlrev_b32 v{T}, 13, v{T}")
    a(f"v_and_b32 v{T + 1}, 7, v{L}")
    a(f"v_lshl_add_u32 v{T + 8}, v{T + 1}, 4, v{T}")
    a(f"s_lshl_b32 s{S_T0}, s{S_QB}, 7")
    a(f"s_lshl_b32 s{S_T1}, s{S_WQ}, 5")
    a(f"s_add_u32 s{S_T0}, s{S_T0}, s{S_T1}")
    a(f"s_lshl_b32 s{S_T0}, s{S_T0}, 13")
    a(f"s_add_u32 s{S_T0}, s{S_T0}, s22")
    a(f"s_lshl_b32 s{S_T1}, s{S_G}, 7")
    a(f"s_add_u32 s{S_T0}, s{S_T0}, s{S_T1}")
    a("s_waitcnt lgkmcnt(0)")
    for i in range(4):
        a(f"ds_read_b128 {vr(V_F + 4 * i, 4)}, v{V_S + (i % nad)} offset:{i * rpi * RBo}")
    for i in range(4):
        a(f"s_waitcnt lgkmcnt({3 - i})")
        a(f"s_add_u32 s{S_T1}, s{S_T0}, {i * 8 * 8192}")
        a(f"buffer_store_dwordx4 {vr(V_F + 4 * i, 4)}, v{T + 8}, s[16:19], s{S_T1} offen")
    a(f"s_add_u32 s{S_PH}, s{S_PH}, 1")
    a(f"s_mov_b32 s{S_QB}, s23")
    a(f"s_cmp_lt_u32 s{S_PH}, 2")
    a(f"s_cbranch_scc1 {phase}")
    wgstamp(1)
    a.label(end)
    a("s_endpgm")
    return name, V_END, 131072
```

```python
from asmlib import vr, sr
import os
FLAGS = set(os.environ.get("GENFLAGS", "").split(","))


class GemmCfg:
    def __init__(self, BM, BN, WM, WN, K, lda, ldb, nsub=1, NS=2):
        self.BM, self.BN, self.WM, self.WN, self.K = BM, BN, WM, WN, K
        self.NS = NS
        self.lda, self.ldb, self.nsub = lda, ldb, nsub
        self.NW = WM * WN
        self.TM, self.TN = BM // WM, BN // WN
        self.MT, self.NT = self.TM // 32, self.TN // 32
        self.BNs = BN // nsub
        self.RB = self.BNs * 2
        assert self.RB in (128, 256, 512)
        self.NTs = self.NT // nsub
        self.XST = BM * 128
        self.WST = 64 * BN * 2
        self.STAGE = self.XST + self.WST
        self.nsteps = K // 64
        self.npx = BM // 8 // self.NW
        self.rpp = 1024 // self.RB
        self.npw = (64 // self.rpp) // self.NW
        assert self.npx >= 1 and self.npw >= 1
        self.v_lane = 1
        self.v_t = 2
        self.v_x = 10
        self.v_w = 11
        base = 12
        self.v_va = base
        base += max(4, self.NT)
        self.v_vb = base
        base += 4
        base = (base + 3) // 4 * 4
        self.v_A = base
        base += 2 * self.NT * 4
        self.v_B = base
        base += 2 * self.MT * 4
        self.v_acc = base
        base += 16 * self.NT * self.MT
        self.v_end = base

    def acc(self, nt, mt):
        return self.v_acc + 16 * (nt * self.MT + mt)

    def reads_per_step(self):
        return 2 * self.NT + self.MT

    def ppw(self):
        return self.npx + self.nsub * self.npw

    def lds_bytes(self):
        return self.NS * self.STAGE


S_SRD_X = 4
S_SRD_W = 8
S_WAVE = 24
S_XOFF = 25
S_WOFF = 26
S_CNT = 28
S_M0W = 29
S_T0 = 30
S_T1 = 31
S_WM = 32
S_WN = 33


def gemm_setup(a, c, s_m0, s_n0_list, s_k0=None):
    L = c.v_lane
    t = c.v_t
    a(f"v_and_b32 v{L}, 63, v0")
    a(f"v_lshrrev_b32 v{t}, 6, v0")
    a("s_nop 0")
    a(f"v_readfirstlane_b32 s{S_WAVE}, v{t}")
    a("s_nop 3")
    gstamp_init(a)
    gstamp(a, c)
    a(f"s_lshl_b32 s{S_M0W}, s{S_WAVE}, 10")
    a(f"s_and_b32 s{S_T0}, s{S_WAVE}, 1")
    a(f"s_and_b32 s{S_WM}, s{S_WAVE}, {c.WM - 1}")
    a(f"s_lshr_b32 s{S_WN}, s{S_WAVE}, {c.WM.bit_length() - 1}")
    a(f"s_lshl_b32 s{S_T1}, s{S_T0}, 2")
    a(f"v_lshrrev_b32 v{t}, 4, v{L}")
    a(f"v_add_u32 v{t}, s{S_T1}, v{t}")
    a(f"v_and_b32 v{t}, 7, v{t}")
    a(f"v_and_b32 v{t + 1}, 7, v{L}")
    a(f"v_xor_b32 v{t}, v{t}, v{t + 1}")
    a(f"v_lshlrev_b32 v{t}, 4, v{t}")
    a(f"v_lshrrev_b32 v{t + 1}, 3, v{L}")
    a(f"s_mov_b32 s{S_T1}, {c.lda}")
    a(f"v_mul_lo_u32 v{t + 1}, v{t + 1}, s{S_T1}")
    a(f"v_add_u32 v{c.v_x}, v{t}, v{t + 1}")
    cpr = c.RB // 16
    lg = cpr.bit_length() - 1
    a(f"v_lshrrev_b32 v{t}, {lg}, v{L}")
    if c.RB == 512:
        a(f"s_lshl_b32 s{S_T1}, s{S_T0}, 1")
        a(f"v_add_u32 v{t + 1}, s{S_T1}, v{t}")
        a(f"v_and_b32 v{t + 1}, 3, v{t + 1}")
        a(f"v_lshlrev_b32 v{t + 1}, 2, v{t + 1}")
    elif c.RB == 256:
        a(f"v_and_b32 v{t + 1}, 3, v{t}")
        a(f"v_lshlrev_b32 v{t + 1}, 2, v{t + 1}")
    else:
        a(f"v_lshrrev_b32 v{t + 1}, 1, v{t}")
        a(f"v_and_b32 v{t + 1}, 1, v{t + 1}")
        a(f"v_lshlrev_b32 v{t + 1}, 2, v{t + 1}")
    a(f"v_and_b32 v{t + 2}, {cpr - 1}, v{L}")
    a(f"v_xor_b32 v{t + 1}, v{t + 1}, v{t + 2}")
    a(f"v_lshlrev_b32 v{t + 1}, 4, v{t + 1}")
    a(f"s_mov_b32 s{S_T1}, {c.ldb}")
    a(f"v_mul_lo_u32 v{t}, v{t}, s{S_T1}")
    a(f"v_add_u32 v{c.v_w}, v{t}, v{t + 1}")
    a(f"s_lshl_b32 s{S_T0}, s{S_WAVE}, 3")
    a(f"s_add_u32 s{S_T0}, s{S_T0}, s{s_m0}")
    a(f"s_mul_i32 s{S_XOFF}, s{S_T0}, {c.lda}")
    if s_k0 is not None:
        a(f"s_lshl_b32 s{S_T0}, s{s_k0}, 1")
        a(f"s_add_u32 s{S_XOFF}, s{S_XOFF}, s{S_T0}")
    for sub in range(c.nsub):
        a(f"s_mul_i32 s{S_T0}, s{S_WAVE}, {c.rpp}")
        if s_k0 is not None:
            a(f"s_add_u32 s{S_T0}, s{S_T0}, s{s_k0}")
        a(f"s_mul_i32 s{S_WOFF + sub}, s{S_T0}, {c.ldb}")
        a(f"s_lshl_b32 s{S_T0}, s{s_n0_list[sub]}, 1")
        a(f"s_add_u32 s{S_WOFF + sub}, s{S_WOFF + sub}, s{S_T0}")


def gemm_dma_pieces(c, buf):
    xb = buf * c.STAGE
    wb = buf * c.STAGE + c.XST
    out = []
    for t in range(c.npx):
        g = [f"s_add_u32 m0, s{S_M0W}, {xb + t * c.NW * 1024}",
             f"s_add_u32 s{S_T0}, s{S_XOFF}, {t * c.NW * 8 * c.lda}",
             f"buffer_load_dwordx4 v{c.v_x}, s[{S_SRD_X}:{S_SRD_X + 3}], s{S_T0} offen lds"]
        if t == c.npx - 1:
            g.append(f"s_add_u32 s{S_XOFF}, s{S_XOFF}, 128")
        out.append(g)
    for sub in range(c.nsub):
        srd = S_SRD_W + 4 * sub
        sb = wb + sub * 64 * c.RB
        for t in range(c.npw):
            g = [f"s_add_u32 m0, s{S_M0W}, {sb + t * c.NW * 1024}",
                 f"s_add_u32 s{S_T0}, s{S_WOFF + sub}, {t * c.NW * c.rpp * c.ldb}",
                 f"buffer_load_dwordx4 v{c.v_w}, s[{srd}:{srd + 3}], s{S_T0} offen lds"]
            if t == c.npw - 1:
                g.append(f"s_add_u32 s{S_WOFF + sub}, s{S_WOFF + sub}, {64 * c.ldb}")
            out.append(g)
    return out


def gemm_dma_prologue(a, c):
    for k in range(min(c.NS - 1, c.nsteps)):
        for g in gemm_dma_pieces(c, k % c.NS):
            for op in g:
                a(op)


def gemm_read_addrs(a, c):
    L = c.v_lane
    t = c.v_t
    a(f"v_and_b32 v{t}, 31, v{L}")
    a(f"s_mul_i32 s{S_T0}, s{S_WM}, {c.TM}")
    a(f"v_add_u32 v{t}, s{S_T0}, v{t}")
    a(f"v_lshrrev_b32 v{t + 1}, 1, v{t}")
    a(f"v_and_b32 v{t + 1}, 7, v{t + 1}")
    a(f"v_lshrrev_b32 v{t + 2}, 5, v{L}")
    a(f"v_xor_b32 v{t + 1}, v{t + 1}, v{t + 2}")
    a(f"v_lshlrev_b32 v{t}, 7, v{t}")
    for s in range(4):
        a(f"v_xor_b32 v{t + 3}, {2 * s}, v{t + 1}")
        a(f"v_lshl_add_u32 v{c.v_vb + s}, v{t + 3}, 4, v{t}")
    a(f"v_and_b32 v{t}, 15, v{L}")
    a(f"v_lshrrev_b32 v{t + 1}, 2, v{t}")
    a(f"v_and_b32 v{t + 2}, 3, v{t}")
    a(f"v_lshrrev_b32 v{t + 3}, 5, v{L}")
    a(f"v_lshl_add_u32 v{t + 3}, v{t + 3}, 3, v{t + 1}")
    a(f"v_lshlrev_b32 v{t + 3}, {c.RB.bit_length() - 1}, v{t + 3}")
    a(f"v_and_b32 v{t + 4}, 1, v{t + 2}")
    a(f"v_lshl_add_u32 v{t + 3}, v{t + 4}, 3, v{t + 3}")
    a(f"v_lshrrev_b32 v{t + 4}, 1, v{t + 2}")
    a(f"v_bfe_u32 v{t + 5}, v{L}, 4, 1")
    a(f"v_lshl_add_u32 v{t + 4}, v{t + 5}, 1, v{t + 4}")
    a(f"v_lshl_add_u32 v{t + 3}, v{t + 4}, 4, v{t + 3}")
    if c.RB == 128:
        a(f"v_lshrrev_b32 v{t + 1}, 1, v{t + 1}")
    for nt in range(c.NT):
        sub = nt // c.NTs
        nts = nt % c.NTs
        a(f"s_mul_i32 s{S_T0}, s{S_WN}, {c.NTs}")
        a(f"s_add_u32 s{S_T0}, s{S_T0}, {nts}")
        a(f"v_xor_b32 v{t + 4}, s{S_T0}, v{t + 1}")
        a(f"v_lshl_add_u32 v{t + 4}, v{t + 4}, 6, v{t + 3}")
        a(f"v_add_u32 v{c.v_va + nt}, {c.XST + sub * 64 * c.RB}, v{t + 4}")


def _reads(a, c, s, st):
    for nt in range(c.NT):
        A = c.v_A + (st * c.NT + nt) * 4
        va = c.v_va + nt
        a(f"ds_read_b64_tr_b16 {vr(A, 2)}, v{va} offset:{16 * s * c.RB}")
        a(f"ds_read_b64_tr_b16 {vr(A + 2, 2)}, v{va} offset:{(16 * s + 4) * c.RB}")
    for mt in range(c.MT):
        B = c.v_B + (st * c.MT + mt) * 4
        a(f"ds_read_b128 {vr(B, 4)}, v{c.v_vb + s} offset:{mt * 4096}")


def gemm_kstep_compute(a, c, pieces, first, advance):
    n = c.reads_per_step()
    nm = 4 * c.NT * c.MT
    every = max(1, nm // max(1, len(pieces)))
    if c.NS == 2:
        every = max(1, every // 3)
    pieces = list(pieces)
    cnt = 0
    _reads(a, c, 0, 0)
    for s in range(4):
        if s < 3:
            _reads(a, c, s + 1, (s + 1) & 1)
            a(f"s_waitcnt lgkmcnt({n})")
        else:
            a("s_waitcnt lgkmcnt(0)")
            if advance is not None:
                for r in list(range(c.v_va, c.v_va + c.NT)) + list(range(c.v_vb, c.v_vb + 4)):
                    a(f"v_add_u32 v{r}, {advance & 0xffffffff}, v{r}")
        st = s & 1
        for nt in range(c.NT):
            A = c.v_A + (st * c.NT + nt) * 4
            for mt in range(c.MT):
                B = c.v_B + (st * c.MT + mt) * 4
                D = c.acc(nt, mt)
                C = "0" if (first and s == 0) else vr(D, 16)
                if "nomfma" not in FLAGS:
                    a(f"v_mfma_f32_32x32x16_bf16 {vr(D, 16)}, {vr(A, 4)}, {vr(B, 4)}, {C}")
                cnt += 1
                if pieces and cnt % every == 0:
                    for op in pieces.pop(0):
                        a(op)
    for g in pieces:
        for op in g:
            a(op)


def gstamp_init(a):
    if "g_stamp" not in FLAGS:
        return
    a("s_load_dwordx2 s[90:91], s[0:1], 88")
    a("s_waitcnt lgkmcnt(0)")
    a("s_mov_b32 s92, s90")
    a("s_mov_b32 s93, s91")
    a("s_mov_b32 s94, 256")
    a("s_mov_b32 s95, 0x00020000")
    a("s_mov_b32 s98, 0")


def gstamp(a, c):
    if "g_stamp" not in FLAGS:
        return
    sk = a.uid("nogs")
    a("s_xor_b32 s99, s2, 8")
    a(f"s_or_b32 s99, s99, s{S_WAVE}")
    a("s_cmp_lg_u32 s99, 0")
    a(f"s_cbranch_scc1 {sk}")
    a("s_memtime s[96:97]")
    a("s_waitcnt lgkmcnt(0)")
    a(f"v_mov_b32 v{c.v_t + 7}, s96")
    a(f"v_mov_b32 v{c.v_t + 6}, s98")
    a(f"buffer_store_dword v{c.v_t + 7}, v{c.v_t + 6}, s[92:95], 0 offen")
    a("s_add_u32 s98, s98, 4")
    a.label(sk)


def gemm_zero_acc(a, c):
    for r in range(16 * c.NT * c.MT):
        a(f"v_mov_b32 v{c.v_acc + r}, 0")


def gemm_mainloop(a, c, extra_vm=0):
    for k in range(c.nsteps):
        inflight = min(c.NS - 2, c.nsteps - 1 - k)
        vm = inflight * c.ppw() + (extra_vm if k == 0 else 0)
        a(f"s_waitcnt vmcnt({min(vm, 63)})")
        a("s_barrier")
        gstamp(a, c)
        kn = k + c.NS - 1
        pieces = gemm_dma_pieces(c, kn % c.NS) if kn < c.nsteps else []
        adv = None
        if k + 1 < c.nsteps:
            nb, cb = (k + 1) % c.NS, k % c.NS
            adv = (nb - cb) * c.STAGE
        gemm_kstep_compute(a, c, pieces, k == 0, adv)
    gstamp(a, c)


def epilogue_to_lds(a, c, nblocks, src_fn, s_base=None):
    L = c.v_lane
    t = c.v_t
    RBo = nblocks * 64
    cpr = RBo // 16
    region = c.TM * RBo
    a(f"v_and_b32 v{t}, 31, v{L}")
    a(f"v_lshlrev_b32 v{t + 1}, {RBo.bit_length() - 1}, v{t}")
    a(f"v_lshrrev_b32 v{t + 2}, 5, v{L}")
    a(f"v_lshl_add_u32 v{t + 1}, v{t + 2}, 3, v{t + 1}")
    if s_base is None:
        a(f"s_mul_i32 s{S_T0}, s{S_WAVE}, {region}")
        a(f"v_add_u32 v{t + 1}, s{S_T0}, v{t + 1}")
    else:
        a(f"v_add_u32 v{t + 1}, s{s_base}, v{t + 1}")
    lgc = cpr.bit_length() - 1
    a(f"v_bfe_u32 v{t + 2}, v{t}, {4 - lgc}, {lgc}")
    a(f"v_lshlrev_b32 v{t + 2}, 4, v{t + 2}")
    for nb in range(nblocks):
        for j in range(4):
            chunk = nb * 4 + j
            a(f"v_xor_b32 v{t + 3}, {chunk << 4}, v{t + 2}")
            a(f"v_add_u32 v{t + 3}, v{t + 3}, v{t + 1}")
            for mt in range(c.MT):
                p = src_fn(nb, mt, j)
                a(f"ds_write_b64 v{t + 3}, {vr(p, 2)} offset:{mt * 32 * RBo}")
    return RBo, region


def epilogue_read_addrs(a, c, RBo, region, vdst, s_base=None):
    L = c.v_lane
    t = c.v_t
    cpr = RBo // 16
    lg = cpr.bit_length() - 1
    rpi = 64 // cpr
    a(f"v_lshrrev_b32 v{t}, {lg}, v{L}")
    a(f"v_lshlrev_b32 v{t}, {RBo.bit_length() - 1}, v{t}")
    if s_base is None:
        a(f"s_mul_i32 s{S_T0}, s{S_WAVE}, {region}")
        a(f"v_add_u32 v{t}, s{S_T0}, v{t}")
    else:
        a(f"v_add_u32 v{t}, s{s_base}, v{t}")
    a(f"v_and_b32 v{t + 1}, {cpr - 1}, v{L}")
    a(f"v_lshrrev_b32 v{t + 2}, 4, v{L}")
    a(f"v_xor_b32 v{t + 1}, v{t + 1}, v{t + 2}")
    a(f"v_lshlrev_b32 v{t + 1}, 4, v{t + 1}")
    nad = max(1, cpr // 4)
    for q in range(nad):
        a(f"v_xor_b32 v{t + 2}, {(4 * q) << 4}, v{t + 1}")
        a(f"v_add_u32 v{vdst + q}, v{t + 2}, v{t}")
    return nad, rpi
```

```python
import sys
sys.path.insert(0, "dev")
from asmlib import *
from gemm import *
from attn3 import gen_attn_kernel

import os
FLAGS = set(os.environ.get("GENFLAGS", "").split(","))
MB = 1 << 20
WS_XN = 0 * MB
WS_H = 2 * MB
WS_HN = 4 * MB
WS_Q = 16 * MB
WS_K = 32 * MB
WS_V = 48 * MB
WS_CTX = 64 * MB
WS_PART = 80 * MB
WS_HH = 96 * MB

KA_X, KA_CKV, KA_WQ, KA_WUK, KA_WUV, KA_WO, KA_BX, KA_WG, KA_WU, KA_WD, KA_OUT, KA_DBG, KA_WS = [8 * i for i in range(13)]


def ln_row(a, vin, vt, s0, out_regs):
    f = vt
    acc = vt + 8
    tmp = vt + 9
    mean = vt + 10
    sd = vt + 11
    for i in range(4):
        a(f"v_lshlrev_b32 v{f + 2 * i}, 16, v{vin + i}")
        a(f"v_and_b32 v{f + 2 * i + 1}, 0xffff0000, v{vin + i}")
    a(f"v_add_f32 v{acc}, v{f}, v{f + 1}")
    for i in range(2, 8):
        a(f"v_add_f32 v{acc}, v{acc}, v{f + i}")
    wave_sum(a, acc, tmp, s0)
    a(f"v_mul_f32 v{mean}, 0x3b000000, v{acc}")
    a(f"v_sub_f32 v{tmp}, v{f}, v{mean}")
    a(f"v_mul_f32 v{acc}, v{tmp}, v{tmp}")
    for i in range(1, 8):
        a(f"v_sub_f32 v{tmp}, v{f + i}, v{mean}")
        a(f"v_fmac_f32 v{acc}, v{tmp}, v{tmp}")
    wave_sum(a, acc, tmp, s0)
    a(f"v_mul_f32 v{acc}, 0x3b000000, v{acc}")
    a(f"v_cvt_pk_bf16_f32 v{tmp}, v{mean}, v{acc}")
    a(f"v_lshlrev_b32 v{mean}, 16, v{tmp}")
    a(f"v_and_b32 v{acc}, 0xffff0000, v{tmp}")
    a(f"v_add_f32 v{acc}, 0x3727c5ac, v{acc}")
    a(f"v_cvt_pk_bf16_f32 v{tmp}, v{acc}, v{acc}")
    a(f"v_lshlrev_b32 v{acc}, 16, v{tmp}")
    a(f"v_sqrt_f32 v{acc}, v{acc}")
    a("s_nop 0")
    a(f"v_cvt_pk_bf16_f32 v{tmp}, v{acc}, v{acc}")
    a(f"v_lshlrev_b32 v{acc}, 16, v{tmp}")
    a(f"v_rcp_f32 v{sd}, v{acc}")
    for i in range(8):
        a(f"v_sub_f32 v{f + i}, v{f + i}, v{mean}")
    for i in range(4):
        a(f"v_cvt_pk_bf16_f32 v{tmp}, v{f + 2 * i}, v{f + 2 * i + 1}")
        a(f"v_lshlrev_b32 v{f + 2 * i}, 16, v{tmp}")
        a(f"v_and_b32 v{f + 2 * i + 1}, 0xffff0000, v{tmp}")
    for i in range(8):
        a(f"v_mul_f32 v{f + i}, v{f + i}, v{sd}")
    for i in range(4):
        a(f"v_cvt_pk_bf16_f32 v{out_regs + i}, v{f + 2 * i}, v{f + 2 * i + 1}")


def plain_pack(a, c, pool, s_scale=None):
    state = {"i": 0}

    def fn(nb, mt, j):
        p = pool[state["i"] % len(pool)]
        state["i"] += 1
        r = c.acc(nb, mt) + 4 * j
        if s_scale is not None:
            for q in range(4):
                a(f"v_mul_f32 v{r + q}, s{s_scale}, v{r + q}")
        a(f"v_cvt_pk_bf16_f32 v{p}, v{r}, v{r + 1}")
        a(f"v_cvt_pk_bf16_f32 v{p + 1}, v{r + 2}, v{r + 3}")
        return p
    return fn


def head_store_epilogue(a, c, srd_out, s_rowbase_bytes, s_scale=None):
    a("s_barrier")
    pool = [c.v_A + 2 * i for i in range(c.NT * 4)]
    RBo, region = epilogue_to_lds(a, c, c.NT, plain_pack(a, c, pool, s_scale))
    nad, rpi = epilogue_read_addrs(a, c, RBo, region, c.v_va)
    L = c.v_lane
    t = c.v_t
    cpr = RBo // 16
    lg = cpr.bit_length() - 1
    a(f"v_lshrrev_b32 v{t}, {lg}, v{L}")
    a(f"v_lshlrev_b32 v{t}, 8, v{t}")
    a(f"v_and_b32 v{t + 1}, {cpr - 1}, v{L}")
    a(f"v_lshl_add_u32 v{c.v_x}, v{t + 1}, 4, v{t}")
    a("s_waitcnt lgkmcnt(0)")
    nins = c.TM // rpi
    for i in range(nins):
        a(f"ds_read_b128 {vr(c.v_acc + 4 * i, 4)}, v{c.v_va + (i % nad)} offset:{i * rpi * RBo}")
    for i in range(nins):
        a(f"s_waitcnt lgkmcnt({min(15, nins - 1 - i)})")
        a(f"s_add_u32 s{S_T0}, s{s_rowbase_bytes}, {i * rpi * 256}")
        if "nostore" not in FLAGS:
            a(f"buffer_store_dwordx4 {vr(c.v_acc + 4 * i, 4)}, v{c.v_x}, s[{srd_out}:{srd_out + 3}], s{S_T0} offen")


def gen_kv_kernel(a):
    name = "kv_kernel"
    c = GemmCfg(BM=256, BN=256, WM=4, WN=2, K=512, lda=1024, ldb=8192)
    kernel_header(a, name)
    end = a.uid("end")
    a("s_cmp_ge_u32 s2, 256")
    a(f"s_cbranch_scc1 {end}")
    a(f"s_load_dwordx4 s[36:39], s[0:1], {KA_X}")
    a(f"s_load_dwordx4 s[40:43], s[0:1], {KA_WUK}")
    a(f"s_load_dwordx2 s[44:45], s[0:1], {KA_WS}")
    a("s_and_b32 s46, s2, 7")
    a("s_lshl_b32 s46, s46, 2")
    a("s_bfe_u32 s47, s2, 0x20003")
    a("s_add_u32 s46, s46, s47")
    a("s_lshr_b32 s47, s2, 5")
    a("s_lshl_b32 s47, s47, 8")
    a("s_and_b32 s48, s46, 15")
    a("s_lshl_b32 s48, s48, 8")
    a("s_waitcnt lgkmcnt(0)")
    make_srd(a, S_SRD_X, 38, 0, 2 * MB)
    a("s_cmp_lt_u32 s46, 16")
    a("s_cselect_b32 s8, s40, s42")
    a("s_cselect_b32 s9, s41, s43")
    a(f"s_mov_b32 s10, {4 * MB}")
    a("s_mov_b32 s11, 0x00020000")
    a(f"s_mov_b32 s50, {WS_V}")
    a(f"s_cselect_b32 s49, {WS_K}, s50")
    a("s_add_u32 s16, s44, s49")
    a("s_addc_u32 s17, s45, 0")
    a(f"s_mov_b32 s18, {16 * MB}")
    a("s_mov_b32 s19, 0x00020000")
    gemm_setup(a, c, 47, [48])
    gemm_dma_prologue(a, c)
    make_srd(a, 52, 36, 0, 2 * MB)
    make_srd(a, 56, 44, WS_XN, 2 * MB)
    a("s_lshl_b32 s50, s2, 3")
    a(f"s_add_u32 s50, s50, s{S_WAVE}")
    a("s_lshl_b32 s50, s50, 10")
    vt = c.v_acc
    a(f"v_lshlrev_b32 v{vt + 20}, 4, v{c.v_lane}")
    a(f"buffer_load_dwordx4 {vr(vt + 16, 4)}, v{vt + 20}, s[52:55], s50 offen")
    gemm_read_addrs(a, c)
    a("s_waitcnt vmcnt(0)")
    ln_row(a, vt + 16, vt, 60, vt + 24)
    a(f"buffer_store_dwordx4 {vr(vt + 24, 4)}, v{vt + 20}, s[56:59], s50 offen")
    a("s_nop 1")
    gemm_mainloop(a, c)
    a("s_lshr_b32 s50, s48, 7")
    a(f"s_add_u32 s50, s50, s{S_WN}")
    a("s_lshl_b32 s50, s50, 19")
    a(f"s_mul_i32 s51, s{S_WM}, {c.TM}")
    a("s_add_u32 s51, s51, s47")
    a("s_lshl_b32 s51, s51, 8")
    a("s_add_u32 s50, s50, s51")
    head_store_epilogue(a, c, 16, 50)
    gstamp(a, c)
    if "g_stamp" in FLAGS:
        a("s_waitcnt vmcnt(0)")
    gstamp(a, c)
    a.label(end)
    a("s_endpgm")
    return name, c.v_end, c.lds_bytes()


def gen_q_kernel(a):
    name = "q_kernel"
    c = GemmCfg(BM=128, BN=256, WM=2, WN=4, K=512, lda=1024, ldb=8192, NS=3)
    kernel_header(a, name)
    end = a.uid("end")
    a("s_cmp_ge_u32 s2, 256")
    a(f"s_cbranch_scc1 {end}")
    a(f"s_load_dwordx2 s[40:41], s[0:1], {KA_WQ}")
    a(f"s_load_dwordx2 s[44:45], s[0:1], {KA_WS}")
    a("s_and_b32 s46, s2, 7")
    a("s_lshl_b32 s46, s46, 1")
    a("s_bfe_u32 s47, s2, 0x10003")
    a("s_add_u32 s46, s46, s47")
    a("s_lshr_b32 s47, s2, 4")
    a("s_lshl_b32 s47, s47, 7")
    a("s_lshl_b32 s48, s46, 8")
    a("s_waitcnt lgkmcnt(0)")
    make_srd(a, S_SRD_X, 44, WS_XN, 2 * MB)
    make_srd(a, S_SRD_W, 40, 0, 4 * MB)
    make_srd(a, 16, 44, WS_Q, 16 * MB)
    gemm_setup(a, c, 47, [48])
    gemm_dma_prologue(a, c)
    gemm_read_addrs(a, c)
    gemm_mainloop(a, c)
    a(f"s_lshl_b32 s50, s{S_WN}, 6")
    a("s_add_u32 s50, s50, s48")
    a("s_lshr_b32 s51, s50, 7")
    a("s_lshl_b32 s51, s51, 19")
    a("s_and_b32 s50, s50, 127")
    a("s_lshl_b32 s50, s50, 1")
    a("s_add_u32 s50, s50, s51")
    a(f"s_mul_i32 s51, s{S_WM}, {c.TM}")
    a("s_add_u32 s51, s51, s47")
    a("s_lshl_b32 s51, s51, 8")
    a("s_add_u32 s50, s50, s51")
    a("s_mov_b32 s52, 0x3e0293ee")
    head_store_epilogue(a, c, 16, 50, 52)
    gstamp(a, c)
    if "g_stamp" in FLAGS:
        a("s_waitcnt vmcnt(0)")
    gstamp(a, c)
    a.label(end)
    a("s_endpgm")
    return name, c.v_end, c.lds_bytes()


def gen_oproj_kernel(a):
    name = "oproj_kernel"
    c = GemmCfg(BM=128, BN=128, WM=2, WN=4, K=1024, lda=8192, ldb=1024, NS=5)
    kernel_header(a, name)
    end = a.uid("end")
    a("s_cmp_ge_u32 s2, 256")
    a(f"s_cbranch_scc1 {end}")
    a(f"s_load_dwordx2 s[40:41], s[0:1], {KA_WO}")
    a(f"s_load_dwordx2 s[44:45], s[0:1], {KA_WS}")
    a("s_and_b32 s46, s2, 7")
    a("s_lshl_b32 s46, s46, 1")
    a("s_bfe_u32 s47, s2, 0x10003")
    a("s_add_u32 s46, s46, s47")
    a("s_lshl_b32 s47, s46, 7")
    a("s_bfe_u32 s48, s2, 0x20004")
    a("s_lshl_b32 s48, s48, 7")
    a("s_lshr_b32 s49, s2, 6")
    a("s_lshl_b32 s50, s49, 10")
    a("s_waitcnt lgkmcnt(0)")
    make_srd(a, S_SRD_X, 44, WS_CTX, 16 * MB)
    make_srd(a, S_SRD_W, 40, 0, 4 * MB)
    make_srd(a, 16, 44, WS_PART, 16 * MB)
    gemm_setup(a, c, 47, [48], 50)
    gemm_dma_prologue(a, c)
    gemm_read_addrs(a, c)
    gemm_mainloop(a, c)
    L, t = c.v_lane, c.v_t
    RBo = c.TN * 4
    region = c.TM * RBo
    a("s_barrier")
    a(f"v_and_b32 v{t}, 31, v{L}")
    a(f"v_lshlrev_b32 v{t + 1}, 7, v{t}")
    a(f"s_mul_i32 s{S_T0}, s{S_WAVE}, {region}")
    a(f"v_add_u32 v{t + 1}, s{S_T0}, v{t + 1}")
    a(f"v_bfe_u32 v{t + 2}, v{t}, 1, 3")
    a(f"v_lshrrev_b32 v{t + 3}, 5, v{L}")
    a(f"v_xor_b32 v{t + 2}, v{t + 2}, v{t + 3}")
    a(f"v_lshlrev_b32 v{t + 2}, 4, v{t + 2}")
    for j in range(4):
        a(f"v_xor_b32 v{t + 3}, {(2 * j) << 4}, v{t + 2}")
        a(f"v_add_u32 v{t + 3}, v{t + 3}, v{t + 1}")
        for mt in range(c.MT):
            a(f"ds_write_b128 v{t + 3}, {vr(c.acc(0, mt) + 4 * j, 4)} offset:{mt * 32 * RBo}")
    nad, rpi = epilogue_read_addrs(a, c, RBo, region, c.v_va)
    a(f"v_lshrrev_b32 v{t}, 3, v{L}")
    a(f"v_lshlrev_b32 v{t}, 11, v{t}")
    a(f"v_and_b32 v{t + 1}, 7, v{L}")
    a(f"v_lshl_add_u32 v{c.v_x}, v{t + 1}, 4, v{t}")
    a("s_lshl_b32 s50, s49, 22")
    a(f"s_mul_i32 s51, s{S_WM}, {c.TM}")
    a("s_add_u32 s51, s51, s47")
    a("s_lshl_b32 s51, s51, 11")
    a("s_add_u32 s50, s50, s51")
    a(f"s_lshl_b32 s51, s{S_WN}, 5")
    a("s_add_u32 s51, s51, s48")
    a("s_lshl_b32 s51, s51, 2")
    a("s_add_u32 s50, s50, s51")
    a("s_waitcnt lgkmcnt(0)")
    nins = c.TM // rpi
    for i in range(nins):
        a(f"ds_read_b128 {vr(c.v_acc + 4 * i, 4)}, v{c.v_va + (i % nad)} offset:{i * rpi * RBo}")
    for i in range(nins):
        a(f"s_waitcnt lgkmcnt({min(15, nins - 1 - i)})")
        a(f"s_add_u32 s{S_T0}, s50, {i * rpi * 2048}")
        a(f"buffer_store_dwordx4 {vr(c.v_acc + 4 * i, 4)}, v{c.v_x}, s[16:19], s{S_T0} offen")
    gstamp(a, c)
    if "g_stamp" in FLAGS:
        a("s_waitcnt vmcnt(0)")
    gstamp(a, c)
    a.label(end)
    a("s_endpgm")
    return name, c.v_end, c.lds_bytes()


def gen_redln_kernel(a):
    name = "redln_kernel"
    kernel_header(a, name)
    end = a.uid("end")
    a("s_cmp_ge_u32 s2, 512")
    a(f"s_cbranch_scc1 {end}")
    a(f"s_load_dwordx2 s[36:37], s[0:1], {KA_X}")
    a(f"s_load_dwordx2 s[44:45], s[0:1], {KA_WS}")
    a("v_and_b32 v1, 63, v0")
    a("v_lshrrev_b32 v2, 6, v0")
    a("s_nop 0")
    a("v_readfirstlane_b32 s24, v2")
    a("s_nop 3")
    a("s_lshl_b32 s25, s2, 2")
    a("s_add_u32 s25, s25, s24")
    a("s_lshl_b32 s26, s25, 10")
    a("s_lshl_b32 s27, s25, 11")
    a("s_waitcnt lgkmcnt(0)")
    make_srd(a, 4, 36, 0, 2 * MB)
    make_srd(a, 8, 44, WS_PART, 16 * MB)
    make_srd(a, 12, 44, WS_H, 2 * MB)
    make_srd(a, 16, 44, WS_HN, 2 * MB)
    a("v_lshlrev_b32 v3, 4, v1")
    a("v_lshlrev_b32 v4, 5, v1")
    a("buffer_load_dwordx4 v[8:11], v3, s[4:7], s26 offen")
    for ks in range(4):
        a(f"s_add_u32 s28, s27, {ks * 4 * MB}")
        a(f"buffer_load_dwordx4 {vr(16 + 8 * ks, 4)}, v4, s[8:11], s28 offen")
        a(f"buffer_load_dwordx4 {vr(20 + 8 * ks, 4)}, v4, s[8:11], s28 offen offset:16")
    a("s_waitcnt vmcnt(0)")
    for i in range(8):
        a(f"v_add_f32 v{16 + i}, v{16 + i}, v{24 + i}")
        a(f"v_add_f32 v{32 + i}, v{32 + i}, v{40 + i}")
        a(f"v_add_f32 v{16 + i}, v{16 + i}, v{32 + i}")
    for i in range(4):
        a(f"v_cvt_pk_bf16_f32 v{24 + i}, v{16 + 2 * i}, v{17 + 2 * i}")
    for i in range(4):
        a(f"v_lshlrev_b32 v{16 + 2 * i}, 16, v{24 + i}")
        a(f"v_and_b32 v{17 + 2 * i}, 0xffff0000, v{24 + i}")
        a(f"v_lshlrev_b32 v{32 + 2 * i}, 16, v{8 + i}")
        a(f"v_and_b32 v{33 + 2 * i}, 0xffff0000, v{8 + i}")
    for i in range(8):
        a(f"v_add_f32 v{16 + i}, v{16 + i}, v{32 + i}")
    for i in range(4):
        a(f"v_cvt_pk_bf16_f32 v{8 + i}, v{16 + 2 * i}, v{17 + 2 * i}")
    a("buffer_store_dwordx4 v[8:11], v3, s[12:15], s26 offen")
    ln_row(a, 8, 16, 60, 40)
    a("buffer_store_dwordx4 v[40:43], v3, s[16:19], s26 offen")
    a.label(end)
    a("s_endpgm")
    return name, 48, 0


def rowmajor_store(a, c, nblocks, src_fn, srd_out, s_base, ld_out, resid=None):
    a("s_barrier")
    RBo, region = epilogue_to_lds(a, c, nblocks, src_fn)
    nad, rpi = epilogue_read_addrs(a, c, RBo, region, c.v_va)
    L, t = c.v_lane, c.v_t
    cpr = RBo // 16
    lg = cpr.bit_length() - 1
    a(f"v_lshrrev_b32 v{t}, {lg}, v{L}")
    a(f"s_mov_b32 s{S_T0}, {ld_out}")
    a(f"v_mul_lo_u32 v{t}, v{t}, s{S_T0}")
    a(f"v_and_b32 v{t + 1}, {cpr - 1}, v{L}")
    a(f"v_lshl_add_u32 v{c.v_x}, v{t + 1}, 4, v{t}")
    nins = c.TM // rpi
    R = c.v_acc
    if resid is not None:
        for i in range(nins):
            a(f"s_add_u32 s{S_T0}, s{s_base}, {i * rpi * ld_out}")
            a(f"buffer_load_dwordx4 {vr(R + 4 * nins + 4 * i, 4)}, v{c.v_x}, s[{resid}:{resid + 3}], s{S_T0} offen")
    a("s_waitcnt lgkmcnt(0)")
    for i in range(nins):
        a(f"ds_read_b128 {vr(R + 4 * i, 4)}, v{c.v_va + (i % nad)} offset:{i * rpi * RBo}")
    if resid is not None:
        a("s_waitcnt vmcnt(0) lgkmcnt(0)")
        for i in range(nins):
            for q in range(4):
                x0 = R + 4 * i + q
                y0 = R + 4 * nins + 4 * i + q
                a(f"v_lshlrev_b32 v{t}, 16, v{x0}")
                a(f"v_and_b32 v{t + 1}, 0xffff0000, v{x0}")
                a(f"v_lshlrev_b32 v{t + 2}, 16, v{y0}")
                a(f"v_and_b32 v{t + 3}, 0xffff0000, v{y0}")
                a(f"v_add_f32 v{t}, v{t}, v{t + 2}")
                a(f"v_add_f32 v{t + 1}, v{t + 1}, v{t + 3}")
                a(f"v_cvt_pk_bf16_f32 v{x0}, v{t}, v{t + 1}")
    for i in range(nins):
        if resid is None:
            a(f"s_waitcnt lgkmcnt({min(15, nins - 1 - i)})")
        a(f"s_add_u32 s{S_T0}, s{s_base}, {i * rpi * ld_out}")
        a(f"buffer_store_dwordx4 {vr(R + 4 * i, 4)}, v{c.v_x}, s[{srd_out}:{srd_out + 3}], s{S_T0} offen")


def gen_glu_kernel(a):
    name = "glu_kernel"
    c = GemmCfg(BM=128, BN=256, WM=2, WN=4, K=512, lda=1024, ldb=3584, nsub=2, NS=3)
    kernel_header(a, name)
    end = a.uid("end")
    a("s_cmp_ge_u32 s2, 224")
    a(f"s_cbranch_scc1 {end}")
    a(f"s_load_dwordx4 s[40:43], s[0:1], {KA_WG}")
    a(f"s_load_dwordx2 s[44:45], s[0:1], {KA_WS}")
    a("s_and_b32 s47, s2, 15")
    a("s_lshl_b32 s47, s47, 7")
    a("s_lshr_b32 s48, s2, 4")
    a("s_lshl_b32 s48, s48, 7")
    a("s_waitcnt lgkmcnt(0)")
    make_srd(a, S_SRD_X, 44, WS_HN, 2 * MB)
    make_srd(a, S_SRD_W, 40, 0, 512 * 1792 * 2)
    make_srd(a, S_SRD_W + 4, 42, 0, 512 * 1792 * 2)
    make_srd(a, 16, 44, WS_HH, 2048 * 1792 * 2)
    gemm_setup(a, c, 47, [48, 48])
    gemm_dma_prologue(a, c)
    gemm_read_addrs(a, c)
    gemm_mainloop(a, c)
    a(f"s_mul_i32 s50, s{S_WM}, {c.TM}")
    a("s_add_u32 s50, s50, s47")
    a("s_mul_i32 s50, s50, 3584")
    a(f"s_lshl_b32 s51, s{S_WN}, 5")
    a("s_add_u32 s51, s51, s48")
    a("s_lshl_b32 s51, s51, 1")
    a("s_add_u32 s50, s50, s51")
    a(f"s_mov_b32 s52, 0xbfb8aa3b")
    pool = [c.v_A + 2 * i for i in range(4)]
    tmp = c.v_A + 8
    st = {"i": 0}

    def src(nb, mt, j):
        p = pool[st["i"] % len(pool)]
        st["i"] += 1
        g = c.acc(0, mt) + 4 * j
        u = c.acc(1, mt) + 4 * j
        for half in range(2):
            g0, g1, u0, u1 = g + 2 * half, g + 2 * half + 1, u + 2 * half, u + 2 * half + 1
            a(f"v_cvt_pk_bf16_f32 v{tmp}, v{g0}, v{g1}")
            a(f"v_cvt_pk_bf16_f32 v{tmp + 1}, v{u0}, v{u1}")
            a(f"v_lshlrev_b32 v{g0}, 16, v{tmp}")
            a(f"v_and_b32 v{g1}, 0xffff0000, v{tmp}")
            a(f"v_mul_f32 v{g0}, s52, v{g0}")
            a(f"v_mul_f32 v{g1}, s52, v{g1}")
            a(f"v_exp_f32 v{g0}, v{g0}")
            a(f"v_exp_f32 v{g1}, v{g1}")
            a(f"v_lshlrev_b32 v{u0}, 16, v{tmp + 1}")
            a(f"v_and_b32 v{u1}, 0xffff0000, v{tmp + 1}")
            a(f"v_add_f32 v{g0}, 1.0, v{g0}")
            a(f"v_add_f32 v{g1}, 1.0, v{g1}")
            a(f"v_rcp_f32 v{g0}, v{g0}")
            a(f"v_rcp_f32 v{g1}, v{g1}")
            a("s_nop 0")
            a(f"v_cvt_pk_bf16_f32 v{tmp}, v{g0}, v{g1}")
            a(f"v_lshlrev_b32 v{g0}, 16, v{tmp}")
            a(f"v_and_b32 v{g1}, 0xffff0000, v{tmp}")
            a(f"v_mul_f32 v{g0}, v{g0}, v{u0}")
            a(f"v_mul_f32 v{g1}, v{g1}, v{u1}")
            a(f"v_cvt_pk_bf16_f32 v{p + half}, v{g0}, v{g1}")
        return p
    rowmajor_store(a, c, 1, src, 16, 50, 3584)
    gstamp(a, c)
    if "g_stamp" in FLAGS:
        a("s_waitcnt vmcnt(0)")
    gstamp(a, c)
    a.label(end)
    a("s_endpgm")
    return name, c.v_end, c.lds_bytes()


def gen_down_kernel(a):
    name = "down_kernel"
    c = GemmCfg(BM=64, BN=64, WM=2, WN=2, K=1792, lda=3584, ldb=1024, NS=8)
    kernel_header(a, name)
    end = a.uid("end")
    a("s_cmp_ge_u32 s2, 256")
    a(f"s_cbranch_scc1 {end}")
    a(f"s_load_dwordx4 s[40:43], s[0:1], {KA_WD}")
    a(f"s_load_dwordx2 s[44:45], s[0:1], {KA_WS}")
    a("s_and_b32 s46, s2, 7")
    a("s_lshl_b32 s46, s46, 2")
    a("s_bfe_u32 s47, s2, 0x20003")
    a("s_add_u32 s46, s46, s47")
    a("s_lshl_b32 s47, s46, 6")
    a("s_lshr_b32 s48, s2, 5")
    a("s_lshl_b32 s48, s48, 6")
    a("s_waitcnt lgkmcnt(0)")
    make_srd(a, S_SRD_X, 44, WS_HH, 2048 * 1792 * 2)
    make_srd(a, S_SRD_W, 40, 0, 1792 * 512 * 2)
    make_srd(a, 16, 42, 0, 2 * MB)
    make_srd(a, 20, 44, WS_H, 2 * MB)
    gemm_setup(a, c, 47, [48])
    gemm_dma_prologue(a, c)
    gemm_read_addrs(a, c)
    gemm_mainloop(a, c)
    a(f"s_mul_i32 s50, s{S_WM}, {c.TM}")
    a("s_add_u32 s50, s50, s47")
    a("s_lshl_b32 s50, s50, 10")
    a(f"s_lshl_b32 s51, s{S_WN}, 5")
    a("s_add_u32 s51, s51, s48")
    a("s_lshl_b32 s51, s51, 1")
    a("s_add_u32 s50, s50, s51")
    pool = [c.v_A + 2 * i for i in range(4)]
    rowmajor_store(a, c, 1, plain_pack(a, c, pool), 16, 50, 1024, resid=20)
    gstamp(a, c)
    if "g_stamp" in FLAGS:
        a("s_waitcnt vmcnt(0)")
    gstamp(a, c)
    a.label(end)
    a("s_endpgm")
    return name, max(c.v_end, c.v_acc + 16), c.lds_bytes()


HEADER = open("sequential_preLN__compressed_kv_cla__glu_gated_glu__prompt.s.ref").read().split("; Override launch")[0]


def build(kernels):
    a = Asm()
    a.raw('.amdgcn_target "amdgcn-amd-amdhsa--gfx950"')
    a.raw(".text")
    infos = []
    for g, grid, block in kernels:
        name, nv, lds = g(a)
        infos.append((name, nv, lds, grid, block))
    a.raw('.section .rodata,"a"')
    for name, nv, lds, grid, block in infos:
        kernel_descriptor(a, name, nv)
    head = HEADER
    for name, nv, lds, grid, block in infos:
        head += f"; @launch kernel={name} grid=({grid},1,1) block=({block},1,1) lds={lds}\n"
    return head + a.text()


if __name__ == "__main__":
    ks = [(gen_kv_kernel, 256, 512), (gen_q_kernel, 256, 512),
          (lambda a: gen_attn_kernel(a, WS_Q, WS_K, WS_V, WS_CTX, KA_WS), 256, 512),
          (gen_oproj_kernel, 256, 512), (gen_redln_kernel, 512, 256), (gen_glu_kernel, 224, 512),
          (gen_down_kernel, 256, 256)]
    out = build(ks)
    dst = sys.argv[1] if len(sys.argv) > 1 else "sequential_preLN__compressed_kv_cla__glu_gated_glu__prompt.s"
    open(dst, "w").write(out)
    print("written", len(out))
```

```python
class Asm:
    def __init__(self):
        self.lines = []
        self._uid = 0

    def __call__(self, s):
        self.lines.append("    " + s)

    def label(self, name):
        self.lines.append(name + ":")

    def raw(self, s):
        self.lines.append(s)

    def comment(self, s):
        self.lines.append("    ; " + s)

    def uid(self, base):
        self._uid += 1
        return f"L_{base}_{self._uid}"

    def text(self):
        return "\n".join(self.lines) + "\n"


def vr(base, n=1):
    return f"v{base}" if n == 1 else f"v[{base}:{base + n - 1}]"


def sr(base, n=1):
    return f"s{base}" if n == 1 else f"s[{base}:{base + n - 1}]"


import os
FLAGS = set(os.environ.get("GENFLAGS", "").split(","))
KIDX = {"n": 0}


def kstamp(a, slot):
    if "k_stamp" not in FLAGS:
        return
    sk = a.uid("noks")
    if slot == 0:
        a("s_load_dwordx2 s[84:85], s[0:1], 96")
        a("v_readfirstlane_b32 s83, v0")
    a("s_cmp_lg_u32 s83, 0")
    a(f"s_cbranch_scc1 {sk}")
    a("s_memrealtime s[86:87]")
    a("s_waitcnt lgkmcnt(0)")
    a(f"s_add_u32 s88, s84, {200 * (1 << 20) + KIDX['n'] * 8192}")
    a("s_addc_u32 s89, s85, 0")
    a("s_mov_b32 s90, 8192")
    a("s_mov_b32 s91, 0x00020000")
    a("s_lshl_b32 s82, s2, 3")
    a(f"s_add_u32 s82, s82, {slot * 4}")
    a("s_mov_b64 s[80:81], exec")
    a("s_mov_b64 exec, 1")
    a("v_mov_b32 v255, s86")
    a("v_mov_b32 v254, 0")
    a("buffer_store_dword v255, v254, s[88:91], s82 offen")
    a("s_waitcnt vmcnt(0)")
    a("s_mov_b64 exec, s[80:81]")
    a.label(sk)
    a("s_waitcnt lgkmcnt(0)")
    if slot == 1:
        KIDX["n"] += 1


def kernel_header(a, name):
    a.raw(f".globl {name}")
    a.raw(".p2align 8")
    a.raw(f".type {name},@function")
    a.label(name)
    kstamp(a, 0)


def kernel_descriptor(a, name, nvgpr, nsgpr=102):
    if "k_stamp" in FLAGS:
        nvgpr = 256
    acc = (nvgpr + 3) // 4 * 4
    a.raw(".p2align 6")
    a.raw(f".amdhsa_kernel {name}")
    a.raw(f"  .amdhsa_next_free_vgpr {nvgpr}")
    a.raw(f"  .amdhsa_next_free_sgpr {nsgpr}")
    a.raw(f"  .amdhsa_accum_offset {acc}")
    a.raw("  .amdhsa_group_segment_fixed_size 0")
    a.raw("  .amdhsa_kernarg_size 104")
    a.raw("  .amdhsa_user_sgpr_count 2")
    a.raw("  .amdhsa_user_sgpr_kernarg_segment_ptr 1")
    a.raw("  .amdhsa_system_sgpr_workgroup_id_x 1")
    a.raw(".end_amdhsa_kernel")


def make_srd(a, dst, ptr_lo, offset, nbytes):
    if offset == 0:
        a(f"s_mov_b32 s{dst}, s{ptr_lo}")
        a(f"s_mov_b32 s{dst + 1}, s{ptr_lo + 1}")
    else:
        a(f"s_add_u32 s{dst}, s{ptr_lo}, {offset}")
        a(f"s_addc_u32 s{dst + 1}, s{ptr_lo + 1}, 0")
    a(f"s_mov_b32 s{dst + 2}, {nbytes}")
    a(f"s_mov_b32 s{dst + 3}, 0x00020000")


def wave_sum(a, v, tmp, s0):
    a("s_nop 1")
    a(f"v_add_f32_dpp v{tmp}, v{v}, v{v} quad_perm:[1,0,3,2] row_mask:0xf bank_mask:0xf")
    a("s_nop 1")
    a(f"v_add_f32_dpp v{v}, v{tmp}, v{tmp} quad_perm:[2,3,0,1] row_mask:0xf bank_mask:0xf")
    a("s_nop 1")
    a(f"v_add_f32_dpp v{tmp}, v{v}, v{v} row_half_mirror row_mask:0xf bank_mask:0xf")
    a("s_nop 1")
    a(f"v_add_f32_dpp v{v}, v{tmp}, v{tmp} row_mirror row_mask:0xf bank_mask:0xf")
    a("s_nop 1")
    a(f"v_readlane_b32 s{s0}, v{v}, 0")
    a(f"v_readlane_b32 s{s0 + 1}, v{v}, 16")
    a(f"v_readlane_b32 s{s0 + 2}, v{v}, 32")
    a(f"v_readlane_b32 s{s0 + 3}, v{v}, 48")
    a("s_nop 1")
    a(f"v_mov_b32 v{v}, s{s0}")
    a(f"v_add_f32 v{v}, s{s0 + 1}, v{v}")
    a(f"v_add_f32 v{v}, s{s0 + 2}, v{v}")
    a(f"v_add_f32 v{v}, s{s0 + 3}, v{v}")
```

```python
import os
from asmlib import *
from gemm import (epilogue_to_lds, epilogue_read_addrs, S_WAVE, S_T0, S_T1, GemmCfg, gemm_setup,
                  gemm_dma_prologue, gemm_read_addrs, gemm_mainloop, S_SRD_X, S_SRD_W)

MB = 1 << 20
FLAGS = set(os.environ.get("GENFLAGS", "").split(","))


class Shim:
    pass


class LdsTrack:
    def __init__(self, a):
        self.a = a
        self.q = []
        self.done = -1

    def read(self, text, tag):
        if "a_nolds" not in FLAGS:
            self.a(text)
        self.q.append(tag)

    def wait(self, tag):
        idx = max(i for i, t in enumerate(self.q) if t == tag)
        if idx <= self.done:
            return
        n = len(self.q) - 1 - idx
        n = min(n, 15)
        self.a(f"s_waitcnt lgkmcnt({n})")
        self.done = len(self.q) - 1 - n


def gen_attn_kernel(a, WS_XN, WS_K, WS_V, WS_CTX, KA_WS, KA_WQ, CTX_LD=8192):
    name = "attn_kernel"
    kernel_header(a, name)
    end = a.uid("end")
    L = 1
    T = 2
    V_DK = 12
    V_DV = 13
    V_KA = 14
    V_VA = 22
    V_M = 26
    V_L = 27
    V_AL = 28
    V_MQ = 29
    V_QO = 30
    V_NEG = 31
    V_Q = 32
    V_O = 64
    V_S = 128
    NF = 6
    V_KF = 192
    V_VF = 216
    V_NM = 240
    V_END = 256
    S_G, S_WQ, S_HB, S_QB, S_N, S_KO, S_I, S_C, S_M0, S_PH, S_VO = 34, 35, 36, 37, 38, 39, 40, 41, 42, 43, 52
    S_MASK = 44
    S_XO, S_XP, S_KF = 53, 63, 64

    a("s_cmp_ge_u32 s2, 256")
    a(f"s_cbranch_scc1 {end}")
    a(f"s_load_dwordx2 s[20:21], s[0:1], {KA_WS}")
    a(f"s_load_dwordx2 s[66:67], s[0:1], {KA_WQ}")
    a(f"v_lshrrev_b32 v{T}, 6, v0")
    a("s_nop 0")
    a(f"v_readfirstlane_b32 s{S_WAVE}, v{T}")
    a("s_nop 3")
    a(f"s_lshr_b32 s{S_G}, s{S_WAVE}, 2")
    a(f"s_and_b32 s{S_WQ}, s{S_WAVE}, 3")
    a(f"s_and_b32 s{S_HB}, s2, 7")
    a(f"s_lshl_b32 s{S_HB}, s{S_HB}, 2")
    a(f"s_bfe_u32 s{S_T0}, s2, 0x20003")
    a(f"s_add_u32 s{S_HB}, s{S_HB}, s{S_T0}")
    a(f"s_lshl_b32 s22, s{S_HB}, 8")
    a(f"s_lshl_b32 s68, s{S_HB}, 7")
    a(f"s_lshl_b32 s{S_HB}, s{S_HB}, 19")
    a("s_lshr_b32 s23, s2, 5")
    a(f"s_mov_b32 s{S_C}, 0x41f00000")
    a(f"s_lshl_b32 s{S_M0}, s{S_G}, 16")
    a(f"s_lshl_b32 s{S_T0}, s{S_WQ}, 10")
    a(f"s_add_u32 s{S_M0}, s{S_M0}, s{S_T0}")
    a(f"s_sub_u32 s{S_QB}, 15, s23")
    a(f"s_cmp_eq_u32 s{S_G}, 0")
    a(f"s_cselect_b32 s69, s{S_QB}, s23")
    a("s_lshl_b32 s69, s69, 7")
    a(f"s_lshl_b32 s{S_T0}, s{S_G}, 5")
    a(f"s_sub_u32 s69, s69, s{S_T0}")
    qc = GemmCfg(BM=256, BN=128, WM=4, WN=2, K=512, lda=1024, ldb=8192, NS=3, x_piece_rows=32,
                 vmap=dict(v_x=V_S + 32, v_w=V_S + 33, v_va=V_S + 36, v_vb=V_S + 40, v_A=V_S, v_B=V_S + 16, v_acc=V_O))
    a("s_waitcnt lgkmcnt(0)")
    make_srd(a, S_SRD_X, 20, WS_XN, 2 * MB)
    make_srd(a, S_SRD_W, 66, 0, 4 * MB)
    gemm_setup(a, qc, 69, [68])
    gemm_dma_prologue(a, qc)
    gemm_read_addrs(a, qc)
    a(f"v_lshrrev_b32 v{T}, 4, v{L}")
    a(f"v_and_b32 v{T + 1}, 15, v{L}")
    a(f"s_lshl_b32 s{S_T0}, s{S_WQ}, 2")
    a(f"v_add_u32 v{T + 2}, s{S_T0}, v{T}")
    a(f"v_xor_b32 v{T + 2}, v{T + 2}, v{T + 1}")
    a(f"v_lshlrev_b32 v{T + 2}, 4, v{T + 2}")
    a(f"v_lshl_add_u32 v{V_DK}, v{T}, 8, v{T + 2}")
    a(f"v_lshlrev_b32 v{T + 2}, 2, v{T}")
    a(f"v_xor_b32 v{T + 2}, v{T + 2}, v{T + 1}")
    a(f"v_lshlrev_b32 v{T + 2}, 4, v{T + 2}")
    a(f"v_lshl_add_u32 v{V_DV}, v{T}, 8, v{T + 2}")
    a(f"v_and_b32 v{T}, 31, v{L}")
    a(f"v_and_b32 v{T + 1}, 15, v{L}")
    a(f"v_lshrrev_b32 v{T + 2}, 5, v{L}")
    a(f"v_xor_b32 v{T + 1}, v{T + 1}, v{T + 2}")
    a(f"v_lshlrev_b32 v{T}, 8, v{T}")
    a(f"s_lshl_b32 s{S_T0}, s{S_G}, 16")
    a(f"v_add_u32 v{T}, s{S_T0}, v{T}")
    for s in range(8):
        a(f"v_xor_b32 v{T + 3}, {2 * s}, v{T + 1}")
        a(f"v_lshl_add_u32 v{V_KA + s}, v{T + 3}, 4, v{T}")
    a(f"v_and_b32 v{T}, 15, v{L}")
    a(f"v_lshrrev_b32 v{T + 1}, 2, v{T}")
    a(f"v_and_b32 v{T + 2}, 3, v{T}")
    a(f"v_lshrrev_b32 v{T + 3}, 5, v{L}")
    a(f"v_lshl_add_u32 v{T + 3}, v{T + 3}, 2, v{T + 1}")
    a(f"v_lshlrev_b32 v{T + 3}, 8, v{T + 3}")
    a(f"v_and_b32 v{T + 4}, 1, v{T + 2}")
    a(f"v_lshl_add_u32 v{T + 3}, v{T + 4}, 3, v{T + 3}")
    a(f"v_lshrrev_b32 v{T + 4}, 1, v{T + 2}")
    a(f"v_bfe_u32 v{T + 5}, v{L}, 4, 1")
    a(f"v_lshl_add_u32 v{T + 4}, v{T + 5}, 1, v{T + 4}")
    a(f"v_lshl_add_u32 v{T + 3}, v{T + 4}, 4, v{T + 3}")
    a(f"s_add_u32 s{S_T0}, s{S_T0}, 16384")
    a(f"v_add_u32 v{T + 3}, s{S_T0}, v{T + 3}")
    for db in range(4):
        a(f"v_xor_b32 v{T + 4}, {db}, v{T + 1}")
        a(f"v_lshl_add_u32 v{V_VA + db}, v{T + 4}, 6, v{T + 3}")
    a(f"v_and_b32 v{T}, 31, v{L}")
    a(f"s_lshl_b32 s{S_T0}, s{S_WQ}, 5")
    a(f"s_lshl_b32 s{S_T1}, s{S_G}, 6")
    a(f"s_sub_u32 s{S_T0}, s{S_T0}, s{S_T1}")
    a(f"v_add_u32 v{T}, s{S_T0}, v{T}")
    a(f"v_lshrrev_b32 v{T + 1}, 5, v{L}")
    a(f"v_lshlrev_b32 v{T + 1}, 2, v{T + 1}")
    a(f"v_sub_u32 v{V_MQ}, v{T}, v{T + 1}")
    a(f"v_and_b32 v{T}, 31, v{L}")
    a(f"v_lshrrev_b32 v{T + 1}, 5, v{L}")
    a(f"v_lshlrev_b32 v{T + 1}, 4, v{T + 1}")
    a(f"v_lshl_add_u32 v{V_QO}, v{T}, 8, v{T + 1}")
    a(f"v_mov_b32 v{V_NEG}, 0xf149f2ca")
    a(f"s_mov_b32 s{S_PH}, 0")

    def dma(which, buf):
        if "a_nodma" in FLAGS:
            return
        vo, srd, so = ((V_DK, 8, S_KO), (V_DV, 12, S_VO))[which]
        for t in range(4):
            a(f"s_add_u32 m0, s{S_M0}, {buf * 32768 + which * 16384 + t * 4096}")
            if t == 0:
                a("s_nop 0")
                a(f"buffer_load_dwordx4 v{vo}, s[{srd}:{srd + 3}], s{so} offen lds")
            else:
                a(f"s_add_u32 s{S_T0}, s{so}, {t * 4096}")
                a(f"buffer_load_dwordx4 v{vo}, s[{srd}:{srd + 3}], s{S_T0} offen lds")
        a(f"s_add_u32 s{so}, s{so}, 32768")

    def dma_piece(which, buf, t, cond):
        if "a_nodma" in FLAGS:
            return []
        vo, srd, so = ((V_DK, 8, S_KO), (V_DV, 12, S_VO))[which]
        ops = []
        lab = None
        if cond is not None:
            lab = a.uid("nop")
            ops.append(f"s_cmp_eq_u32 s{cond}, 0")
            ops.append(f"s_cbranch_scc1 {lab}")
        ops.append(f"s_add_u32 m0, s{S_M0}, {buf * 32768 + which * 16384 + t * 4096}")
        ops.append(f"s_add_u32 s{S_T0}, s{so}, {t * 4096}")
        ops.append(f"buffer_load_dwordx4 v{vo}, s[{srd}:{srd + 3}], s{S_T0} offen lds")
        if t == 3:
            ops.append(f"s_add_u32 s{so}, s{so}, 32768")
        if lab is not None:
            ops.append(lab + ":")
        return ops

    def emit(op):
        if op.endswith(":"):
            a.label(op[:-1])
        else:
            a(op)

    def exp_ops(Sp, lo, hi):
        ops = []
        G = 4
        prev = None
        for g0 in range(lo, hi, G):
            for r in range(g0, g0 + G):
                ops.append(f"v_exp_f32 v{Sp + r}, v{Sp + r}")
            if prev is not None:
                ops += adds_and_pack(Sp, prev, prev == 0)
            prev = g0
        ops.append("s_nop 0")
        ops += adds_and_pack(Sp, prev, prev == 0)
        if hi == 32 and "a_dot" not in FLAGS:
            ops.append(f"v_add_f32 v{V_L}, v{V_L}, v{T + 8}")
            ops.append(f"v_add_f32 v{V_L}, v{V_L}, v{T + 9}")
        return ops

    def adds_and_pack(Sp, g0, first):
        ops = []
        if "a_dot" in FLAGS:
            ops.append(f"v_cvt_pk_bf16_f32 v{Sp + g0 // 2}, v{Sp + g0}, v{Sp + g0 + 1}")
            ops.append(f"v_cvt_pk_bf16_f32 v{Sp + g0 // 2 + 1}, v{Sp + g0 + 2}, v{Sp + g0 + 3}")
            ops.append(f"v_dot2c_f32_bf16 v{V_L}, v{Sp + g0 // 2}, v{V_QO}")
            ops.append(f"v_dot2c_f32_bf16 v{V_AL}, v{Sp + g0 // 2 + 1}, v{V_QO}")
            return ops
        if first:
            ops.append(f"v_add_f32 v{T + 8}, v{Sp + g0}, v{Sp + g0 + 1}")
            ops.append(f"v_add_f32 v{T + 9}, v{Sp + g0 + 2}, v{Sp + g0 + 3}")
        else:
            ops.append(f"v_add_f32 v{T + 8}, v{T + 8}, v{Sp + g0}")
            ops.append(f"v_add_f32 v{T + 9}, v{T + 9}, v{Sp + g0 + 1}")
            ops.append(f"v_add_f32 v{T + 8}, v{T + 8}, v{Sp + g0 + 2}")
            ops.append(f"v_add_f32 v{T + 9}, v{T + 9}, v{Sp + g0 + 3}")
        ops.append(f"v_cvt_pk_bf16_f32 v{Sp + g0 // 2}, v{Sp + g0}, v{Sp + g0 + 1}")
        ops.append(f"v_cvt_pk_bf16_f32 v{Sp + g0 // 2 + 1}, v{Sp + g0 + 2}, v{Sp + g0 + 3}")
        return ops

    def max_ops(Sc):
        ops = []
        ops.append(f"v_max3_f32 v{T}, v{Sc}, v{Sc + 1}, v{Sc + 2}")
        ops.append(f"v_max3_f32 v{T + 1}, v{Sc + 3}, v{Sc + 4}, v{Sc + 5}")
        for r in range(6, 30, 4):
            ops.append(f"v_max3_f32 v{T}, v{T}, v{Sc + r}, v{Sc + r + 1}")
            ops.append(f"v_max3_f32 v{T + 1}, v{T + 1}, v{Sc + r + 2}, v{Sc + r + 3}")
        ops.append(f"v_max3_f32 v{T}, v{T}, v{Sc + 30}, v{Sc + 31}")
        ops.append(f"v_max_f32 v{T}, v{T}, v{T + 1}")
        return ops

    def max_update(Sc, first):
        a(f"v_mov_b32 v{T + 1}, v{T}")
        a("s_nop 1")
        a(f"v_permlane32_swap_b32 v{T}, v{T + 1}")
        a(f"v_max_f32 v{T}, v{T}, v{T + 1}")
        if first:
            a(f"v_max_f32 v{T}, 0xe0ad78ec, v{T}")
        else:
            a(f"v_max_f32 v{T}, 0, v{T}")
        a(f"v_exp_f32 v{V_AL}, -v{T}")
        a(f"v_add_f32 v{V_M}, v{V_M}, v{T}")
        for r in range(32):
            a(f"v_sub_f32 v{Sc + r}, v{Sc + r}, v{T}")
        for r in range(16):
            a(f"v_sub_f32 v{V_NM + r}, 0, v{V_M}")
        if not first:
            a(f"v_mul_f32 v{V_L}, v{V_L}, v{V_AL}")
            for r in range(64):
                a(f"v_mul_f32 v{V_O + r}, v{V_O + r}, v{V_AL}")

    def v_read(tr, f, vbuf):
        ks, db = f // 4, f % 4
        F = V_VF + (f % NF) * 4
        tr.read(f"ds_read_b64_tr_b16 {vr(F, 2)}, v{V_VA + db} offset:{vbuf * 32768 + 16 * ks * 256}", ("v", f))
        tr.read(f"ds_read_b64_tr_b16 {vr(F + 2, 2)}, v{V_VA + db} offset:{vbuf * 32768 + (16 * ks + 8) * 256}", ("v", f))

    def k_read(tr, f, kbuf, nxt=False):
        kb, s = f % 2, f // 2
        F = V_KF + (f % NF) * 4
        tr.read(f"ds_read_b128 {vr(F, 4)}, v{V_KA + s} offset:{kbuf * 32768 + kb * 8192}", ("kn" if nxt else "k", f))

    SPLIT = int(os.environ.get("ATT_SPLIT", "24"))
    HB = int(os.environ.get("ATT_HB", "12"))
    GM = int(os.environ.get("ATT_GM", "1"))

    def next_head(tr, par):
        a("s_waitcnt vmcnt(0) lgkmcnt(0)")
        tr.done = len(tr.q) - 1
        if "a_nobar" not in FLAGS:
            a("s_barrier")
        stamp()
        for f in range(NF):
            k_read(tr, f, par ^ 1, nxt=True)
        a(f"s_add_u32 s{S_I}, s{S_I}, 1")
        a(f"s_add_u32 s{S_T1}, s{S_I}, 1")
        a(f"s_cmp_lt_u32 s{S_T1}, s{S_N}")
        a(f"s_cselect_b32 s{S_KF}, 1, 0")

    def iteration(par, do_qk, do_prev, may_mask, hook=None):
        Sc = V_S + 32 * par
        Sp = V_S + 32 * (par ^ 1)
        tr = LdsTrack(a)
        novalu = "a_novalu" in FLAGS
        va = exp_ops(Sp, 0, SPLIT) if (do_prev and not novalu) else []
        if do_prev:
            tr.q = [("k", f) for f in range(NF)]
        if do_qk and not do_prev:
            for f in range(NF):
                k_read(tr, f, par)
        elif not do_qk:
            for f in range(NF):
                v_read(tr, f, par ^ 1)
        if hook is not None:
            hook()
        nm = 16 if do_qk else 0
        per = (len(va) + max(nm, 1) - 1) // max(nm, 1)
        xg = {f: [] for f in range(16)}
        if do_qk:
            for t in range(4):
                xg[2 * t] += dma_piece(0, par ^ 1, t, S_KF)
                xg[8 + 2 * t] += dma_piece(1, par, t, None)
        vi = 0
        for f0 in range(0, nm, GM):
            tr.wait(("k", f0 + GM - 1))
            for f in range(f0, f0 + GM):
                kb, s = f % 2, f // 2
                D = Sc + 16 * kb
                C = vr(V_NM, 16) if s == 0 else vr(D, 16)
                if "a_nomfma" not in FLAGS:
                    a(f"v_mfma_f32_32x32x16_bf16 {vr(D, 16)}, {vr(V_KF + (f % NF) * 4, 4)}, {vr(V_Q + 4 * s, 4)}, {C}")
            for f in range(f0, f0 + GM):
                if f + NF < 16:
                    k_read(tr, f + NF, par)
                elif do_prev:
                    v_read(tr, f + NF - 16, par ^ 1)
            for f in range(f0, f0 + GM):
                for op in xg[f]:
                    emit(op)
                for op in va[vi:vi + per]:
                    a(op)
                vi += per
        for op in va[vi:]:
            a(op)
        if do_qk and may_mask:
            nomask = a.uid("nomask")
            a(f"s_cmp_lg_u32 s{S_KF}, 0")
            a(f"s_cbranch_scc1 {nomask}")
            a("s_nop 7")
            a("s_nop 3")
            for r0 in range(0, 32, 4):
                for i in range(4):
                    r = r0 + i
                    key = (r >> 4) * 32 + ((r & 15) >> 2) * 8 + (r & 3)
                    a(f"v_cmp_le_i32 s[{S_MASK + 2 * i}:{S_MASK + 2 * i + 1}], {key}, v{V_MQ}")
                a("s_nop 1")
                for i in range(4):
                    r = r0 + i
                    a(f"v_cndmask_b32 v{Sc + r}, v{V_NEG}, v{Sc + r}, s[{S_MASK + 2 * i}:{S_MASK + 2 * i + 1}]")
            a.label(nomask)
        vb = max_ops(Sc) if (do_qk and "a_nomax" not in FLAGS) else []
        if not do_prev:
            a("s_nop 7")
            a("s_nop 3")
            for op in vb:
                a(op)
            next_head(tr, par)
            max_update(Sc, True)
            return
        a("s_nop 1")
        gaps = {f: [] for f in range(16)}
        v2 = exp_ops(Sp, SPLIT, 32) if not novalu else []
        nks = SPLIT // 8
        span = list(range(0, 4 * nks - GM))
        per = (len(v2) + len(span) - 1) // len(span)
        for k, f in enumerate(span):
            gaps[f] += v2[k * per:(k + 1) * per]
        if do_qk:
            span = list(range(5, 14))
            per = (len(vb) + len(span) - 1) // len(span)
            for k, f in enumerate(span):
                gaps[f] += vb[k * per:(k + 1) * per]
            gaps[14].append(f"v_cmp_lt_f32 vcc, s{S_C}, v{T}")
        gaps[4 * nks - 1].append("s_nop 1")
        for f0 in range(0, 16, GM):
            if do_qk and f0 == HB:
                next_head(tr, par)
            tr.wait(("v", f0 + GM - 1))
            for f in range(f0, f0 + GM):
                ks, db = f // 4, f % 4
                D = V_O + 16 * db
                if "a_nomfma" not in FLAGS:
                    a(f"v_mfma_f32_32x32x16_bf16 {vr(D, 16)}, {vr(V_VF + (f % NF) * 4, 4)}, {vr(Sp + 4 * ks, 4)}, {vr(D, 16)}")
            for f in range(f0, f0 + GM):
                if f + NF < 16:
                    v_read(tr, f + NF, par ^ 1)
            for f in range(f0, f0 + GM):
                for op in gaps[f]:
                    a(op)
        if do_qk:
            skip = a.uid("norescale")
            a(f"s_cbranch_vccz {skip}")
            a("s_nop 7")
            a("s_nop 3")
            max_update(Sc, False)
            a.label(skip)

    def stamp(real=False):
        if "a_stamp" not in FLAGS:
            return
        sk = a.uid("nostamp")
        a(f"s_or_b32 s{S_T0}, s2, s{S_WAVE}")
        a(f"s_cmp_lg_u32 s{S_T0}, 0")
        a(f"s_cbranch_scc1 {sk}")
        a("s_memrealtime s[60:61]" if real else "s_memtime s[60:61]")
        a("s_waitcnt lgkmcnt(0)")
        a(f"v_mov_b32 v{T + 7}, s60")
        a(f"v_mov_b32 v{T + 6}, s62")
        a(f"buffer_store_dword v{T + 7}, v{T + 6}, s[56:59], 0 offen")
        a("s_add_u32 s62, s62, 4")
        a.label(sk)

    def iter_head(par, vm=0):
        a(f"s_waitcnt vmcnt({vm})")
        a("s_barrier")
        stamp()
        a(f"s_add_u32 s{S_T1}, s{S_I}, 1")
        a(f"s_cmp_lt_u32 s{S_T1}, s{S_N}")
        a(f"s_cselect_b32 s{S_KF}, 1, 0")

    QIMG = (16384, 131072)

    def k0_dma():
        a(f"s_lshl_b32 s{S_KO}, s{S_G}, 14")
        a(f"s_add_u32 s{S_KO}, s{S_KO}, s{S_HB}")
        a(f"s_lshl_b32 s{S_T0}, s{S_WQ}, 10")
        a(f"s_add_u32 s{S_KO}, s{S_KO}, s{S_T0}")
        a(f"s_mov_b32 s{S_VO}, s{S_KO}")
        dma(0, 0)

    def q_frag_reads(blk):
        a(f"s_lshl_b32 s{S_T0}, s{S_G}, 16")
        a(f"s_lshl_b32 s{S_T1}, s{S_WQ}, 13")
        a(f"s_sub_u32 s{S_T0}, s{S_T1}, s{S_T0}")
        a(f"s_add_u32 s{S_T0}, s{S_T0}, {QIMG[blk]}")
        for s in range(8):
            a(f"v_add_u32 v{T + 7}, s{S_T0}, v{V_KA + s}")
            a(f"ds_read_b128 {vr(V_Q + 4 * s, 4)}, v{T + 7}")

    def next_phase_hook():
        sk = a.uid("nonext")
        jn = a.uid("hookj")
        a(f"s_cmp_lg_u32 s{S_PH}, 0")
        a(f"s_cbranch_scc1 {sk}")
        k0_dma()
        q_frag_reads(1)
        a("s_waitcnt lgkmcnt(0)")
        a(f"s_branch {jn}")
        a.label(sk)
        if "a_nopf" not in FLAGS:
            a(f"v_lshlrev_b32 v{V_Q + 31}, 4, v{L}")
            make_srd(a, 76, 66, 0, 4 * MB)
            a(f"buffer_load_dwordx4 {vr(V_Q, 4)}, v{V_Q + 31}, s[76:79], s74 offen")
            a(f"buffer_load_dwordx4 {vr(V_Q + 4, 4)}, v{V_Q + 31}, s[76:79], s74 offen offset:1024")
            for k, pr in enumerate((68, 70, 72)):
                make_srd(a, 76, pr, 0, 512 * 1792 * 2)
                a(f"buffer_load_dwordx4 {vr(V_Q + 8 + 4 * k, 4)}, v{V_Q + 31}, s[76:79], s75 offen")
        a.label(jn)

    if "a_stamp" in FLAGS:
        a("s_load_dwordx2 s[54:55], s[0:1], 88")
        a("s_waitcnt lgkmcnt(0)")
        make_srd(a, 56, 54, 0, 256)
        a("s_mov_b32 s62, 0")
    def wgstamp(slot):
        if "a_wgstamp" not in FLAGS:
            return
        sk = a.uid("nowgs")
        a(f"s_cmp_lg_u32 s{S_WAVE}, 0")
        a(f"s_cbranch_scc1 {sk}")
        a("s_memrealtime s[60:61]")
        make_srd(a, 56, 20, 200 * MB, 65536)
        a("s_waitcnt lgkmcnt(0)")
        a(f"v_mov_b32 v{T + 7}, s60")
        a(f"s_lshl_b32 s{S_T0}, s2, 4")
        a(f"s_add_u32 s{S_T0}, s{S_T0}, {slot * 4}")
        a(f"v_mov_b32 v{T + 6}, s{S_T0}")
        a(f"buffer_store_dword v{T + 7}, v{T + 6}, s[56:59], 0 offen")
        if slot == 0:
            a("s_getreg_b32 s60, hwreg(HW_REG_HW_ID)")
            a("s_getreg_b32 s61, hwreg(HW_REG_XCC_ID)")
            a(f"v_mov_b32 v{T + 7}, s60")
            a(f"buffer_store_dword v{T + 7}, v{T + 6}, s[56:59], 0 offen offset:8")
            a(f"v_mov_b32 v{T + 7}, s61")
            a(f"buffer_store_dword v{T + 7}, v{T + 6}, s[56:59], 0 offen offset:12")
        a.label(sk)
    wgstamp(0)
    gemm_mainloop(a, qc)
    make_srd(a, 8, 20, WS_K, 16 * MB)
    make_srd(a, 12, 20, WS_V, 16 * MB)
    make_srd(a, 16, 20, WS_CTX, 2048 * CTX_LD)
    a("s_barrier")
    k0_dma()
    a(f"s_mov_b32 s{S_T1}, 0x3e0293ee")
    a(f"v_and_b32 v{T}, 31, v{L}")
    a(f"s_lshl_b32 s{S_T0}, s{S_WQ}, 5")
    a(f"v_add_u32 v{T + 1}, s{S_T0}, v{T}")
    a(f"v_lshlrev_b32 v{T + 1}, 8, v{T + 1}")
    a(f"v_lshrrev_b32 v{T + 2}, 5, v{L}")
    a(f"v_lshl_add_u32 v{T + 1}, v{T + 2}, 3, v{T + 1}")
    a(f"v_add_u32 v{T + 5}, {QIMG[1]}, v{T + 1}")
    a(f"v_add_u32 v{T + 1}, {QIMG[0]}, v{T + 1}")
    a(f"v_and_b32 v{T + 2}, 15, v{T}")
    a(f"s_lshl_b32 s{S_T0}, s{S_G}, 3")
    a(f"v_xor_b32 v{T + 2}, s{S_T0}, v{T + 2}")
    a(f"v_lshlrev_b32 v{T + 2}, 4, v{T + 2}")
    pi = 0
    for nt in range(2):
        for j in range(4):
            a(f"v_xor_b32 v{T + 3}, {(nt * 4 + j) << 4}, v{T + 2}")
            a(f"v_add_u32 v{T + 4}, v{T + 3}, v{T + 5}")
            a(f"v_add_u32 v{T + 3}, v{T + 3}, v{T + 1}")
            for mt in range(2):
                r = qc.acc(nt, mt) + 4 * j
                pp = V_S + 2 * (pi % 8)
                pi += 1
                for q in range(4):
                    a(f"v_mul_f32 v{r + q}, s{S_T1}, v{r + q}")
                a(f"v_cvt_pk_bf16_f32 v{pp}, v{r}, v{r + 1}")
                a(f"v_cvt_pk_bf16_f32 v{pp + 1}, v{r + 2}, v{r + 3}")
                a(f"ds_write_b64 v{T + 3 + mt}, {vr(pp, 2)}")
    a("s_waitcnt lgkmcnt(0)")
    a("s_barrier")
    q_frag_reads(0)
    a("s_load_dwordx2 s[66:67], s[0:1], 40")
    a("s_load_dwordx4 s[68:71], s[0:1], 56")
    a("s_load_dwordx2 s[72:73], s[0:1], 72")
    a(f"s_lshl_b32 s{S_T0}, s2, 3")
    a(f"s_add_u32 s{S_T0}, s{S_T0}, s{S_WAVE}")
    a(f"s_lshl_b32 s74, s{S_T0}, 11")
    a(f"s_lshl_b32 s75, s{S_T0}, 10")
    a("s_waitcnt lgkmcnt(0)")
    a(f"s_mul_i32 s{S_T0}, s{S_WQ}, 8704")
    a(f"s_add_u32 s{S_T0}, s{S_T0}, 16384")
    a(f"s_lshl_b32 s{S_T1}, s{S_G}, 16")
    a(f"s_add_u32 s{S_XO}, s{S_T0}, s{S_T1}")
    a(f"s_xor_b32 s{S_XP}, s{S_XO}, 65536")
    a("s_waitcnt vmcnt(0) lgkmcnt(0)")
    phase = a.uid("phase")
    a.label(phase)
    for r in range(64):
        a(f"v_mov_b32 v{V_O + r}, 0")
    for r in range(16):
        a(f"v_mov_b32 v{V_NM + r}, 0")
    a(f"v_mov_b32 v{V_M}, 0")
    a(f"v_mov_b32 v{V_L}, 0")
    a(f"s_add_u32 s{S_N}, s{S_QB}, 1")
    a(f"s_mov_b32 s{S_I}, 0")
    iter_head(0, 4)
    iteration(0, True, False, True)
    loop = a.uid("aloop")
    tail0 = a.uid("tail0")
    tail1 = a.uid("tail1")
    done = a.uid("adone")
    a.label(loop)
    a(f"s_cmp_ge_u32 s{S_I}, s{S_N}")
    a(f"s_cbranch_scc1 {tail1}")
    iteration(1, True, True, True)
    a(f"s_cmp_ge_u32 s{S_I}, s{S_N}")
    a(f"s_cbranch_scc1 {tail0}")
    iteration(0, True, True, True)
    a(f"s_branch {loop}")
    a.label(tail1)
    iteration(1, False, True, False, next_phase_hook)
    a(f"s_branch {done}")
    a.label(tail0)
    iteration(0, False, True, False, next_phase_hook)
    a.label(done)

    V_F = V_KF
    stamp()
    stamp(True)
    a("s_barrier")
    a(f"v_mov_b32 v{T}, v{V_L}")
    a("s_nop 1")
    a(f"v_permlane32_swap_b32 v{T}, v{V_L}")
    a(f"v_add_f32 v{V_L}, v{V_L}, v{T}")
    a(f"v_lshlrev_b32 v{T}, 4, v{L}")
    a(f"v_add_u32 v{T + 1}, s{S_XO}, v{T}")
    a(f"v_add_u32 v{T + 2}, s{S_XP}, v{T}")
    a(f"v_lshlrev_b32 v{T}, 2, v{L}")
    a(f"v_add_u32 v{T + 3}, s{S_XO}, v{T}")
    a(f"v_add_u32 v{T + 4}, s{S_XP}, v{T}")
    g1 = a.uid("g1")
    gj = a.uid("gj")
    a(f"s_cmp_eq_u32 s{S_G}, 1")
    a(f"s_cbranch_scc1 {g1}")
    for t in range(8):
        a(f"ds_write_b128 v{T + 1}, {vr(V_O + 32 + 4 * t, 4)} offset:{t * 1024}")
    a(f"s_branch {gj}")
    a.label(g1)
    for t in range(8):
        a(f"ds_write_b128 v{T + 1}, {vr(V_O + 4 * t, 4)} offset:{t * 1024}")
    for r in range(32):
        a(f"v_mov_b32 v{V_O + r}, v{V_O + 32 + r}")
    a.label(gj)
    a(f"ds_write_b32 v{T + 3}, v{V_M} offset:8192")
    a(f"ds_write_b32 v{T + 3}, v{V_L} offset:8448")
    a("s_waitcnt lgkmcnt(0)")
    a("s_barrier")
    for t in range(8):
        a(f"ds_read_b128 {vr(V_F + 4 * t, 4)}, v{T + 2} offset:{t * 1024}")
    a(f"ds_read_b32 v{T + 5}, v{T + 4} offset:8192")
    a(f"ds_read_b32 v{T + 6}, v{T + 4} offset:8448")
    a("s_waitcnt lgkmcnt(0)")
    a(f"v_max_f32 v{T}, v{V_M}, v{T + 5}")
    a(f"v_sub_f32 v{T + 1}, v{V_M}, v{T}")
    a(f"v_sub_f32 v{T + 2}, v{T + 5}, v{T}")
    a(f"v_exp_f32 v{T + 1}, v{T + 1}")
    a(f"v_exp_f32 v{T + 2}, v{T + 2}")
    a("s_nop 0")
    a(f"v_mul_f32 v{T + 3}, v{T + 1}, v{V_L}")
    a(f"v_fmac_f32 v{T + 3}, v{T + 2}, v{T + 6}")
    a(f"v_rcp_f32 v{T + 3}, v{T + 3}")
    a("s_nop 0")
    a(f"v_mul_f32 v{T + 1}, v{T + 1}, v{T + 3}")
    a(f"v_mul_f32 v{T + 2}, v{T + 2}, v{T + 3}")
    for r in range(32):
        a(f"v_mul_f32 v{V_O + r}, v{V_O + r}, v{T + 1}")
        a(f"v_fmac_f32 v{V_O + r}, v{V_F + r}, v{T + 2}")
    a("s_barrier")
    c = Shim()
    c.v_lane, c.v_t, c.TM, c.MT = L, T, 32, 1
    pool = [V_S + 32 + 2 * i for i in range(8)]
    st = {"i": 0}

    def src(nb, mt, j):
        p = pool[st["i"] % len(pool)]
        st["i"] += 1
        r = V_O + 16 * nb + 4 * j
        a(f"v_cvt_pk_bf16_f32 v{p}, v{r}, v{r + 1}")
        a(f"v_cvt_pk_bf16_f32 v{p + 1}, v{r + 2}, v{r + 3}")
        return p
    RBo, region = epilogue_to_lds(a, c, 2, src, S_XO)
    nad, rpi = epilogue_read_addrs(a, c, RBo, region, V_S, S_XO)
    a(f"v_lshrrev_b32 v{T}, 3, v{L}")
    a(f"v_mul_u32_u24 v{T}, {CTX_LD}, v{T}")
    a(f"v_and_b32 v{T + 1}, 7, v{L}")
    a(f"v_lshl_add_u32 v{T + 8}, v{T + 1}, 4, v{T}")
    a(f"s_lshl_b32 s{S_T0}, s{S_QB}, 7")
    a(f"s_lshl_b32 s{S_T1}, s{S_WQ}, 5")
    a(f"s_add_u32 s{S_T0}, s{S_T0}, s{S_T1}")
    a(f"s_mul_i32 s{S_T0}, s{S_T0}, {CTX_LD}")
    a(f"s_add_u32 s{S_T0}, s{S_T0}, s22")
    a(f"s_lshl_b32 s{S_T1}, s{S_G}, 7")
    a(f"s_add_u32 s{S_T0}, s{S_T0}, s{S_T1}")
    a("s_waitcnt lgkmcnt(0)")
    for i in range(4):
        a(f"ds_read_b128 {vr(V_F + 4 * i, 4)}, v{V_S + (i % nad)} offset:{i * rpi * RBo}")
    for i in range(4):
        a(f"s_waitcnt lgkmcnt({3 - i})")
        a(f"s_add_u32 s{S_T1}, s{S_T0}, {i * 8 * CTX_LD}")
        a(f"buffer_store_dwordx4 {vr(V_F + 4 * i, 4)}, v{T + 8}, s[16:19], s{S_T1} offen")
    a(f"s_add_u32 s{S_PH}, s{S_PH}, 1")
    a(f"s_mov_b32 s{S_QB}, s23")
    a(f"s_cmp_lt_u32 s{S_PH}, 2")
    a(f"s_cbranch_scc1 {phase}")
    wgstamp(1)
    if "k_stamp" in FLAGS:
        a("s_waitcnt vmcnt(0)")
    kstamp(a, 1)
    a.label(end)
    a("s_endpgm")
    return name, V_END, 163840
```

```python
from asmlib import vr, sr
import os
FLAGS = set(os.environ.get("GENFLAGS", "").split(","))


class GemmCfg:
    def __init__(self, BM, BN, WM, WN, K, lda, ldb, nsub=1, NS=2, vmap=None, x_piece_rows=None, BK=64):
        self.BM, self.BN, self.WM, self.WN, self.K = BM, BN, WM, WN, K
        self.NS = NS
        self.BK = BK
        self.XR = BK * 2
        self.KS = BK // 16
        self.rpx = 1024 // self.XR
        self.lda, self.ldb, self.nsub = lda, ldb, nsub
        self.NW = WM * WN
        self.TM, self.TN = BM // WM, BN // WN
        self.MT, self.NT = self.TM // 32, self.TN // 32
        self.BNs = BN // nsub
        self.RB = self.BNs * 2
        assert self.RB in (128, 256, 512)
        self.NTs = self.NT // nsub
        self.XST = BM * self.XR
        self.WST = BK * BN * 2
        self.STAGE = self.XST + self.WST
        self.nsteps = K // BK
        self.npx = BM // self.rpx // self.NW
        self.rpp = 1024 // self.RB
        self.npw = (BK // self.rpp) // self.NW
        assert self.npx >= 1 and self.npw >= 1
        self.v_lane = 1
        self.v_t = 2
        self.v_x = 10
        self.v_w = 11
        base = 12
        self.v_va = base
        base += max(4, self.NT)
        self.v_vb = base
        base += 4
        base = (base + 3) // 4 * 4
        self.v_A = base
        base += 2 * self.NT * 4
        self.v_B = base
        base += 2 * self.MT * 4
        self.v_acc = base
        base += 16 * self.NT * self.MT
        self.v_end = base
        if vmap:
            for k, v in vmap.items():
                setattr(self, k, v)
        self.x_piece_rows = x_piece_rows if x_piece_rows is not None else self.NW * self.rpx

    def acc(self, nt, mt):
        return self.v_acc + 16 * (nt * self.MT + mt)

    def reads_per_step(self):
        return 2 * self.NT + self.MT

    def ppw(self):
        return self.npx + self.nsub * self.npw

    def lds_bytes(self):
        return self.NS * self.STAGE


S_SRD_X = 4
S_SRD_W = 8
S_WAVE = 24
S_XOFF = 25
S_WOFF = 26
S_CNT = 28
S_M0W = 29
S_T0 = 30
S_T1 = 31
S_WM = 32
S_WN = 33


def gemm_setup(a, c, s_m0, s_n0_list, s_k0=None):
    L = c.v_lane
    t = c.v_t
    a(f"v_and_b32 v{L}, 63, v0")
    a(f"v_lshrrev_b32 v{t}, 6, v0")
    a("s_nop 0")
    a(f"v_readfirstlane_b32 s{S_WAVE}, v{t}")
    a("s_nop 3")
    gstamp_init(a)
    gstamp(a, c)
    a(f"s_lshl_b32 s{S_M0W}, s{S_WAVE}, 10")
    a(f"s_and_b32 s{S_T0}, s{S_WAVE}, 1")
    a(f"s_and_b32 s{S_WM}, s{S_WAVE}, {c.WM - 1}")
    a(f"s_lshr_b32 s{S_WN}, s{S_WAVE}, {c.WM.bit_length() - 1}")
    if c.BK == 64:
        a(f"s_lshl_b32 s{S_T1}, s{S_T0}, 2")
        a(f"v_lshrrev_b32 v{t}, 4, v{L}")
        a(f"v_add_u32 v{t}, s{S_T1}, v{t}")
        a(f"v_and_b32 v{t}, 7, v{t}")
        a(f"v_and_b32 v{t + 1}, 7, v{L}")
        a(f"v_xor_b32 v{t}, v{t}, v{t + 1}")
        a(f"v_lshlrev_b32 v{t}, 4, v{t}")
        a(f"v_lshrrev_b32 v{t + 1}, 3, v{L}")
    else:
        a(f"v_lshrrev_b32 v{t}, 4, v{L}")
        a(f"v_and_b32 v{t + 1}, 3, v{L}")
        a(f"v_xor_b32 v{t}, v{t}, v{t + 1}")
        a(f"v_lshlrev_b32 v{t}, 4, v{t}")
        a(f"v_lshrrev_b32 v{t + 1}, 2, v{L}")
    a(f"s_mov_b32 s{S_T1}, {c.lda}")
    a(f"v_mul_lo_u32 v{t + 1}, v{t + 1}, s{S_T1}")
    a(f"v_add_u32 v{c.v_x}, v{t}, v{t + 1}")
    cpr = c.RB // 16
    lg = cpr.bit_length() - 1
    a(f"v_lshrrev_b32 v{t}, {lg}, v{L}")
    if c.RB == 512:
        a(f"s_lshl_b32 s{S_T1}, s{S_T0}, 1")
        a(f"v_add_u32 v{t + 1}, s{S_T1}, v{t}")
        a(f"v_and_b32 v{t + 1}, 3, v{t + 1}")
        a(f"v_lshlrev_b32 v{t + 1}, 2, v{t + 1}")
    elif c.RB == 256:
        a(f"v_and_b32 v{t + 1}, 3, v{t}")
        a(f"v_lshlrev_b32 v{t + 1}, 2, v{t + 1}")
    else:
        a(f"v_lshrrev_b32 v{t + 1}, 1, v{t}")
        a(f"v_and_b32 v{t + 1}, 1, v{t + 1}")
        a(f"v_lshlrev_b32 v{t + 1}, 2, v{t + 1}")
    a(f"v_and_b32 v{t + 2}, {cpr - 1}, v{L}")
    a(f"v_xor_b32 v{t + 1}, v{t + 1}, v{t + 2}")
    a(f"v_lshlrev_b32 v{t + 1}, 4, v{t + 1}")
    a(f"s_mov_b32 s{S_T1}, {c.ldb}")
    a(f"v_mul_lo_u32 v{t}, v{t}, s{S_T1}")
    a(f"v_add_u32 v{c.v_w}, v{t}, v{t + 1}")
    a(f"s_mul_i32 s{S_T0}, s{S_WAVE}, {c.rpx}")
    a(f"s_add_u32 s{S_T0}, s{S_T0}, s{s_m0}")
    a(f"s_mul_i32 s{S_XOFF}, s{S_T0}, {c.lda}")
    if s_k0 is not None:
        a(f"s_lshl_b32 s{S_T0}, s{s_k0}, 1")
        a(f"s_add_u32 s{S_XOFF}, s{S_XOFF}, s{S_T0}")
    for sub in range(c.nsub):
        a(f"s_mul_i32 s{S_T0}, s{S_WAVE}, {c.rpp}")
        if s_k0 is not None:
            a(f"s_add_u32 s{S_T0}, s{S_T0}, s{s_k0}")
        a(f"s_mul_i32 s{S_WOFF + sub}, s{S_T0}, {c.ldb}")
        a(f"s_lshl_b32 s{S_T0}, s{s_n0_list[sub]}, 1")
        a(f"s_add_u32 s{S_WOFF + sub}, s{S_WOFF + sub}, s{S_T0}")


def gemm_dma_pieces(c, buf):
    xb = buf * c.STAGE
    wb = buf * c.STAGE + c.XST
    out = []
    for t in range(c.npx):
        g = [f"s_add_u32 m0, s{S_M0W}, {xb + t * c.NW * 1024}",
             f"s_add_u32 s{S_T0}, s{S_XOFF}, {t * c.x_piece_rows * c.lda}",
             f"buffer_load_dwordx4 v{c.v_x}, s[{S_SRD_X}:{S_SRD_X + 3}], s{S_T0} offen lds"]
        if t == c.npx - 1:
            g.append(f"s_add_u32 s{S_XOFF}, s{S_XOFF}, {c.XR}")
        out.append(g)
    for sub in range(c.nsub):
        srd = S_SRD_W + 4 * sub
        sb = wb + sub * c.BK * c.RB
        for t in range(c.npw):
            g = [f"s_add_u32 m0, s{S_M0W}, {sb + t * c.NW * 1024}",
                 f"s_add_u32 s{S_T0}, s{S_WOFF + sub}, {t * c.NW * c.rpp * c.ldb}",
                 f"buffer_load_dwordx4 v{c.v_w}, s[{srd}:{srd + 3}], s{S_T0} offen lds"]
            if t == c.npw - 1:
                g.append(f"s_add_u32 s{S_WOFF + sub}, s{S_WOFF + sub}, {c.BK * c.ldb}")
            out.append(g)
    return out


def gemm_dma_prologue(a, c):
    for k in range(min(c.NS - 1, c.nsteps)):
        for g in gemm_dma_pieces(c, k % c.NS):
            for op in g:
                a(op)


def gemm_read_addrs(a, c):
    L = c.v_lane
    t = c.v_t
    a(f"v_and_b32 v{t}, 31, v{L}")
    a(f"s_mul_i32 s{S_T0}, s{S_WM}, {c.TM}")
    a(f"v_add_u32 v{t}, s{S_T0}, v{t}")
    if c.BK == 64:
        a(f"v_bfe_u32 v{t + 1}, v{t}, 1, 3")
    else:
        a(f"v_bfe_u32 v{t + 1}, v{t}, 2, 2")
    a(f"v_lshrrev_b32 v{t + 2}, 5, v{L}")
    a(f"v_xor_b32 v{t + 1}, v{t + 1}, v{t + 2}")
    a(f"v_lshlrev_b32 v{t}, {c.XR.bit_length() - 1}, v{t}")
    for s in range(c.KS):
        a(f"v_xor_b32 v{t + 3}, {2 * s}, v{t + 1}")
        a(f"v_lshl_add_u32 v{c.v_vb + s}, v{t + 3}, 4, v{t}")
    a(f"v_and_b32 v{t}, 15, v{L}")
    a(f"v_lshrrev_b32 v{t + 1}, 2, v{t}")
    a(f"v_and_b32 v{t + 2}, 3, v{t}")
    a(f"v_lshrrev_b32 v{t + 3}, 5, v{L}")
    a(f"v_lshl_add_u32 v{t + 3}, v{t + 3}, 3, v{t + 1}")
    a(f"v_lshlrev_b32 v{t + 3}, {c.RB.bit_length() - 1}, v{t + 3}")
    a(f"v_and_b32 v{t + 4}, 1, v{t + 2}")
    a(f"v_lshl_add_u32 v{t + 3}, v{t + 4}, 3, v{t + 3}")
    a(f"v_lshrrev_b32 v{t + 4}, 1, v{t + 2}")
    a(f"v_bfe_u32 v{t + 5}, v{L}, 4, 1")
    a(f"v_lshl_add_u32 v{t + 4}, v{t + 5}, 1, v{t + 4}")
    a(f"v_lshl_add_u32 v{t + 3}, v{t + 4}, 4, v{t + 3}")
    if c.RB == 128:
        a(f"v_lshrrev_b32 v{t + 1}, 1, v{t + 1}")
    for nt in range(c.NT):
        sub = nt // c.NTs
        nts = nt % c.NTs
        a(f"s_mul_i32 s{S_T0}, s{S_WN}, {c.NTs}")
        a(f"s_add_u32 s{S_T0}, s{S_T0}, {nts}")
        a(f"v_xor_b32 v{t + 4}, s{S_T0}, v{t + 1}")
        a(f"v_lshl_add_u32 v{t + 4}, v{t + 4}, 6, v{t + 3}")
        a(f"v_add_u32 v{c.v_va + nt}, {c.XST + sub * c.BK * c.RB}, v{t + 4}")


def _reads(a, c, s, st):
    for nt in range(c.NT):
        A = c.v_A + (st * c.NT + nt) * 4
        va = c.v_va + nt
        a(f"ds_read_b64_tr_b16 {vr(A, 2)}, v{va} offset:{16 * s * c.RB}")
        a(f"ds_read_b64_tr_b16 {vr(A + 2, 2)}, v{va} offset:{(16 * s + 4) * c.RB}")
    for mt in range(c.MT):
        B = c.v_B + (st * c.MT + mt) * 4
        a(f"ds_read_b128 {vr(B, 4)}, v{c.v_vb + s} offset:{mt * 32 * c.XR}")


def gemm_kstep_compute(a, c, pieces, first, advance, fill=None):
    n = c.reads_per_step()
    nm = c.KS * c.NT * c.MT
    every = max(1, nm // max(1, len(pieces)))
    if c.NS == 2:
        every = max(1, every // 3)
    pieces = list(pieces)
    cnt = 0
    _reads(a, c, 0, 0)
    for s in range(c.KS):
        if s < c.KS - 1:
            _reads(a, c, s + 1, (s + 1) & 1)
            a(f"s_waitcnt lgkmcnt({n})")
        else:
            a("s_waitcnt lgkmcnt(0)")
            if advance is not None:
                for r in list(range(c.v_va, c.v_va + c.NT)) + list(range(c.v_vb, c.v_vb + c.KS)):
                    a(f"v_add_u32 v{r}, {advance & 0xffffffff}, v{r}")
        st = s & 1
        for nt in range(c.NT):
            A = c.v_A + (st * c.NT + nt) * 4
            for mt in range(c.MT):
                B = c.v_B + (st * c.MT + mt) * 4
                D = c.acc(nt, mt)
                C = "0" if (first and s == 0) else vr(D, 16)
                if "nomfma" not in FLAGS:
                    a(f"v_mfma_f32_32x32x16_bf16 {vr(D, 16)}, {vr(A, 4)}, {vr(B, 4)}, {C}")
                cnt += 1
                if pieces and cnt % every == 0:
                    for op in pieces.pop(0):
                        a(op)
                elif fill:
                    for op in fill.pop(0):
                        a(op)
    for g in pieces:
        for op in g:
            a(op)


def gstamp_init(a):
    if "g_stamp" not in FLAGS:
        return
    a("s_load_dwordx2 s[90:91], s[0:1], 88")
    a("s_waitcnt lgkmcnt(0)")
    a("s_mov_b32 s92, s90")
    a("s_mov_b32 s93, s91")
    a("s_mov_b32 s94, 256")
    a("s_mov_b32 s95, 0x00020000")
    a("s_mov_b32 s98, 0")


def gstamp(a, c):
    if "g_stamp" not in FLAGS:
        return
    sk = a.uid("nogs")
    a("s_xor_b32 s99, s2, 8")
    a(f"s_or_b32 s99, s99, s{S_WAVE}")
    a("s_cmp_lg_u32 s99, 0")
    a(f"s_cbranch_scc1 {sk}")
    a("s_memtime s[96:97]")
    a("s_waitcnt lgkmcnt(0)")
    a(f"v_mov_b32 v{c.v_t + 7}, s96")
    a(f"v_mov_b32 v{c.v_t + 6}, s98")
    a(f"buffer_store_dword v{c.v_t + 7}, v{c.v_t + 6}, s[92:95], 0 offen")
    a("s_add_u32 s98, s98, 4")
    a.label(sk)


def gemm_zero_acc(a, c):
    for r in range(16 * c.NT * c.MT):
        a(f"v_mov_b32 v{c.v_acc + r}, 0")


def gemm_mainloop(a, c, extra_vm=0, fill=None, fill_from=2):
    for k in range(c.nsteps):
        inflight = min(c.NS - 2, c.nsteps - 1 - k)
        vm = inflight * c.ppw() + (extra_vm if k == 0 else 0)
        a(f"s_waitcnt vmcnt({min(vm, 63)})")
        a("s_barrier")
        gstamp(a, c)
        kn = k + c.NS - 1
        pieces = gemm_dma_pieces(c, kn % c.NS) if kn < c.nsteps else []
        adv = None
        if k + 1 < c.nsteps:
            nb, cb = (k + 1) % c.NS, k % c.NS
            adv = (nb - cb) * c.STAGE
        gemm_kstep_compute(a, c, pieces, k == 0, adv, fill if k >= fill_from else None)
    assert not fill
    gstamp(a, c)


def epilogue_to_lds(a, c, nblocks, src_fn, s_base=None):
    L = c.v_lane
    t = c.v_t
    RBo = nblocks * 64
    cpr = RBo // 16
    region = c.TM * RBo
    a(f"v_and_b32 v{t}, 31, v{L}")
    a(f"v_lshlrev_b32 v{t + 1}, {RBo.bit_length() - 1}, v{t}")
    a(f"v_lshrrev_b32 v{t + 2}, 5, v{L}")
    a(f"v_lshl_add_u32 v{t + 1}, v{t + 2}, 3, v{t + 1}")
    if s_base is None:
        a(f"s_mul_i32 s{S_T0}, s{S_WAVE}, {region}")
        a(f"v_add_u32 v{t + 1}, s{S_T0}, v{t + 1}")
    else:
        a(f"v_add_u32 v{t + 1}, s{s_base}, v{t + 1}")
    lgc = cpr.bit_length() - 1
    a(f"v_bfe_u32 v{t + 2}, v{t}, {4 - lgc}, {lgc}")
    a(f"v_lshlrev_b32 v{t + 2}, 4, v{t + 2}")
    for nb in range(nblocks):
        for j in range(4):
            chunk = nb * 4 + j
            a(f"v_xor_b32 v{t + 3}, {chunk << 4}, v{t + 2}")
            a(f"v_add_u32 v{t + 3}, v{t + 3}, v{t + 1}")
            for mt in range(c.MT):
                p = src_fn(nb, mt, j)
                a(f"ds_write_b64 v{t + 3}, {vr(p, 2)} offset:{mt * 32 * RBo}")
    return RBo, region


def epilogue_read_addrs(a, c, RBo, region, vdst, s_base=None):
    L = c.v_lane
    t = c.v_t
    cpr = RBo // 16
    lg = cpr.bit_length() - 1
    rpi = 64 // cpr
    a(f"v_lshrrev_b32 v{t}, {lg}, v{L}")
    a(f"v_lshlrev_b32 v{t}, {RBo.bit_length() - 1}, v{t}")
    if s_base is None:
        a(f"s_mul_i32 s{S_T0}, s{S_WAVE}, {region}")
        a(f"v_add_u32 v{t}, s{S_T0}, v{t}")
    else:
        a(f"v_add_u32 v{t}, s{s_base}, v{t}")
    a(f"v_and_b32 v{t + 1}, {cpr - 1}, v{L}")
    a(f"v_lshrrev_b32 v{t + 2}, 4, v{L}")
    a(f"v_xor_b32 v{t + 1}, v{t + 1}, v{t + 2}")
    a(f"v_lshlrev_b32 v{t + 1}, 4, v{t + 1}")
    nad = max(1, cpr // 4)
    for q in range(nad):
        a(f"v_xor_b32 v{t + 2}, {(4 * q) << 4}, v{t + 1}")
        a(f"v_add_u32 v{vdst + q}, v{t + 2}, v{t}")
    return nad, rpi
```

```python
import sys
sys.path.insert(0, "dev")
from asmlib import *
from gemm import *
from attn4 import gen_attn_kernel

import os
FLAGS = set(os.environ.get("GENFLAGS", "").split(","))
MB = 1 << 20
WS_XN = 0 * MB
WS_H = 2 * MB
WS_HN = 4 * MB
WS_Q = 16 * MB
WS_K = 32 * MB
WS_V = 48 * MB
WS_CTX = 64 * MB
CTX_LD = int(os.environ.get("CTX_LD", "8192"))
WS_PART = 84 * MB
WS_HH = 100 * MB

KA_X, KA_CKV, KA_WQ, KA_WUK, KA_WUV, KA_WO, KA_BX, KA_WG, KA_WU, KA_WD, KA_OUT, KA_DBG, KA_WS = [8 * i for i in range(13)]


def ln_row(a, vin, vt, s0, out_regs):
    f = vt
    acc = vt + 8
    tmp = vt + 9
    mean = vt + 10
    sd = vt + 11
    for i in range(4):
        a(f"v_lshlrev_b32 v{f + 2 * i}, 16, v{vin + i}")
        a(f"v_and_b32 v{f + 2 * i + 1}, 0xffff0000, v{vin + i}")
    a(f"v_add_f32 v{acc}, v{f}, v{f + 1}")
    for i in range(2, 8):
        a(f"v_add_f32 v{acc}, v{acc}, v{f + i}")
    wave_sum(a, acc, tmp, s0)
    a(f"v_mul_f32 v{mean}, 0x3b000000, v{acc}")
    a(f"v_sub_f32 v{tmp}, v{f}, v{mean}")
    a(f"v_mul_f32 v{acc}, v{tmp}, v{tmp}")
    for i in range(1, 8):
        a(f"v_sub_f32 v{tmp}, v{f + i}, v{mean}")
        a(f"v_fmac_f32 v{acc}, v{tmp}, v{tmp}")
    wave_sum(a, acc, tmp, s0)
    a(f"v_mul_f32 v{acc}, 0x3b000000, v{acc}")
    a(f"v_cvt_pk_bf16_f32 v{tmp}, v{mean}, v{acc}")
    a(f"v_lshlrev_b32 v{mean}, 16, v{tmp}")
    a(f"v_and_b32 v{acc}, 0xffff0000, v{tmp}")
    a(f"v_add_f32 v{acc}, 0x3727c5ac, v{acc}")
    a(f"v_cvt_pk_bf16_f32 v{tmp}, v{acc}, v{acc}")
    a(f"v_lshlrev_b32 v{acc}, 16, v{tmp}")
    a(f"v_sqrt_f32 v{acc}, v{acc}")
    a("s_nop 0")
    a(f"v_cvt_pk_bf16_f32 v{tmp}, v{acc}, v{acc}")
    a(f"v_lshlrev_b32 v{acc}, 16, v{tmp}")
    a(f"v_rcp_f32 v{sd}, v{acc}")
    for i in range(8):
        a(f"v_sub_f32 v{f + i}, v{f + i}, v{mean}")
    for i in range(4):
        a(f"v_cvt_pk_bf16_f32 v{tmp}, v{f + 2 * i}, v{f + 2 * i + 1}")
        a(f"v_lshlrev_b32 v{f + 2 * i}, 16, v{tmp}")
        a(f"v_and_b32 v{f + 2 * i + 1}, 0xffff0000, v{tmp}")
    for i in range(8):
        a(f"v_mul_f32 v{f + i}, v{f + i}, v{sd}")
    for i in range(4):
        a(f"v_cvt_pk_bf16_f32 v{out_regs + i}, v{f + 2 * i}, v{f + 2 * i + 1}")


def plain_pack(a, c, pool, s_scale=None):
    state = {"i": 0}

    def fn(nb, mt, j):
        p = pool[state["i"] % len(pool)]
        state["i"] += 1
        r = c.acc(nb, mt) + 4 * j
        if s_scale is not None:
            for q in range(4):
                a(f"v_mul_f32 v{r + q}, s{s_scale}, v{r + q}")
        a(f"v_cvt_pk_bf16_f32 v{p}, v{r}, v{r + 1}")
        a(f"v_cvt_pk_bf16_f32 v{p + 1}, v{r + 2}, v{r + 3}")
        return p
    return fn


def head_store_epilogue(a, c, srd_out, s_rowbase_bytes, s_scale=None):
    a("s_barrier")
    pool = [c.v_A + 2 * i for i in range(c.NT * 4)]
    RBo, region = epilogue_to_lds(a, c, c.NT, plain_pack(a, c, pool, s_scale))
    nad, rpi = epilogue_read_addrs(a, c, RBo, region, c.v_va)
    L = c.v_lane
    t = c.v_t
    cpr = RBo // 16
    lg = cpr.bit_length() - 1
    a(f"v_lshrrev_b32 v{t}, {lg}, v{L}")
    a(f"v_lshlrev_b32 v{t}, 8, v{t}")
    a(f"v_and_b32 v{t + 1}, {cpr - 1}, v{L}")
    a(f"v_lshl_add_u32 v{c.v_x}, v{t + 1}, 4, v{t}")
    a("s_waitcnt lgkmcnt(0)")
    nins = c.TM // rpi
    for i in range(nins):
        a(f"ds_read_b128 {vr(c.v_acc + 4 * i, 4)}, v{c.v_va + (i % nad)} offset:{i * rpi * RBo}")
    for i in range(nins):
        a(f"s_waitcnt lgkmcnt({min(15, nins - 1 - i)})")
        a(f"s_add_u32 s{S_T0}, s{s_rowbase_bytes}, {i * rpi * 256}")
        if "nostore" not in FLAGS:
            a(f"buffer_store_dwordx4 {vr(c.v_acc + 4 * i, 4)}, v{c.v_x}, s[{srd_out}:{srd_out + 3}], s{S_T0} offen")


def gen_kv_kernel(a):
    name = "kv_kernel"
    c = GemmCfg(BM=256, BN=256, WM=4, WN=2, K=512, lda=1024, ldb=8192, BK=int(os.environ.get("KVBK", "64")), NS=int(os.environ.get("KVNS", "2")))
    kernel_header(a, name)
    end = a.uid("end")
    a("s_cmp_ge_u32 s2, 256")
    a(f"s_cbranch_scc1 {end}")
    a(f"s_load_dwordx4 s[36:39], s[0:1], {KA_X}")
    a(f"s_load_dwordx4 s[40:43], s[0:1], {KA_WUK}")
    a(f"s_load_dwordx2 s[44:45], s[0:1], {KA_WS}")
    a("s_and_b32 s46, s2, 7")
    a("s_lshl_b32 s46, s46, 2")
    a("s_bfe_u32 s47, s2, 0x20003")
    a("s_add_u32 s46, s46, s47")
    a("s_lshr_b32 s47, s2, 5")
    a("s_lshl_b32 s47, s47, 8")
    a("s_and_b32 s48, s46, 15")
    a("s_lshl_b32 s48, s48, 8")
    a("s_waitcnt lgkmcnt(0)")
    make_srd(a, S_SRD_X, 38, 0, 2 * MB)
    a("s_cmp_lt_u32 s46, 16")
    a("s_cselect_b32 s8, s40, s42")
    a("s_cselect_b32 s9, s41, s43")
    a(f"s_mov_b32 s10, {4 * MB}")
    a("s_mov_b32 s11, 0x00020000")
    a(f"s_mov_b32 s50, {WS_V}")
    a(f"s_cselect_b32 s49, {WS_K}, s50")
    a("s_add_u32 s16, s44, s49")
    a("s_addc_u32 s17, s45, 0")
    a(f"s_mov_b32 s18, {16 * MB}")
    a("s_mov_b32 s19, 0x00020000")
    gemm_setup(a, c, 47, [48])
    gemm_dma_prologue(a, c)
    make_srd(a, 52, 36, 0, 2 * MB)
    make_srd(a, 56, 44, WS_XN, 2 * MB)
    a("s_lshl_b32 s53_, s2, 3".replace("s53_", "s60"))
    a(f"s_add_u32 s60, s60, s{S_WAVE}")
    a("s_lshl_b32 s60, s60, 10")
    vx = c.v_end
    a(f"v_lshlrev_b32 v{vx + 4}, 4, v{c.v_lane}")
    a(f"buffer_load_dwordx4 {vr(vx, 4)}, v{vx + 4}, s[52:55], s60 offen")
    gemm_read_addrs(a, c)
    la = Asm()
    ln_row(la, vx, vx + 8, 64, vx + 24)
    la(f"buffer_store_dwordx4 {vr(vx + 24, 4)}, v{vx + 4}, s[56:59], s60 offen")
    lines = [l.strip() for l in la.lines]
    fill = [lines[i:i + 3] for i in range(0, len(lines), 3)]
    gemm_mainloop(a, c, fill=fill)
    a("s_lshr_b32 s50, s48, 7")
    a(f"s_add_u32 s50, s50, s{S_WN}")
    a("s_lshl_b32 s50, s50, 19")
    a(f"s_mul_i32 s51, s{S_WM}, {c.TM}")
    a("s_add_u32 s51, s51, s47")
    a("s_lshl_b32 s51, s51, 8")
    a("s_add_u32 s50, s50, s51")
    if "a_nopf" not in FLAGS:
        a(f"s_load_dwordx2 s[68:69], s[0:1], {KA_WQ}")
        a("s_lshl_b32 s70, s60, 1")
        a("s_waitcnt lgkmcnt(0)")
        make_srd(a, 72, 68, 0, 4 * MB)
    head_store_epilogue(a, c, 16, 50)
    vt = c.v_A
    if "a_nopf" not in FLAGS:
        a(f"buffer_load_dwordx4 {vr(c.v_B, 4)}, v{vx + 4}, s[72:75], s70 offen")
        a(f"buffer_load_dwordx4 {vr(c.v_B + 4, 4)}, v{vx + 4}, s[72:75], s70 offen offset:1024")
    gstamp(a, c)
    if "g_stamp" in FLAGS:
        a("s_waitcnt vmcnt(0)")
    gstamp(a, c)
    if "k_stamp" in FLAGS:
        a("s_waitcnt vmcnt(0)")
    kstamp(a, 1)
    a.label(end)
    a("s_endpgm")
    return name, c.v_end + 28, c.lds_bytes()


def gen_q_kernel(a):
    name = "q_kernel"
    c = GemmCfg(BM=128, BN=256, WM=2, WN=4, K=512, lda=1024, ldb=8192, NS=3)
    kernel_header(a, name)
    end = a.uid("end")
    a("s_cmp_ge_u32 s2, 256")
    a(f"s_cbranch_scc1 {end}")
    a(f"s_load_dwordx2 s[40:41], s[0:1], {KA_WQ}")
    a(f"s_load_dwordx2 s[44:45], s[0:1], {KA_WS}")
    a("s_and_b32 s46, s2, 7")
    a("s_lshl_b32 s46, s46, 1")
    a("s_bfe_u32 s47, s2, 0x10003")
    a("s_add_u32 s46, s46, s47")
    a("s_lshr_b32 s47, s2, 4")
    a("s_lshl_b32 s47, s47, 7")
    a("s_lshl_b32 s48, s46, 8")
    a("s_waitcnt lgkmcnt(0)")
    make_srd(a, S_SRD_X, 44, WS_XN, 2 * MB)
    make_srd(a, S_SRD_W, 40, 0, 4 * MB)
    make_srd(a, 16, 44, WS_Q, 16 * MB)
    gemm_setup(a, c, 47, [48])
    gemm_dma_prologue(a, c)
    gemm_read_addrs(a, c)
    gemm_mainloop(a, c)
    a(f"s_lshl_b32 s50, s{S_WN}, 6")
    a("s_add_u32 s50, s50, s48")
    a("s_lshr_b32 s51, s50, 7")
    a("s_lshl_b32 s51, s51, 19")
    a("s_and_b32 s50, s50, 127")
    a("s_lshl_b32 s50, s50, 1")
    a("s_add_u32 s50, s50, s51")
    a(f"s_mul_i32 s51, s{S_WM}, {c.TM}")
    a("s_add_u32 s51, s51, s47")
    a("s_lshl_b32 s51, s51, 8")
    a("s_add_u32 s50, s50, s51")
    a("s_mov_b32 s52, 0x3e0293ee")
    head_store_epilogue(a, c, 16, 50, 52)
    gstamp(a, c)
    if "g_stamp" in FLAGS:
        a("s_waitcnt vmcnt(0)")
    gstamp(a, c)
    if "k_stamp" in FLAGS:
        a("s_waitcnt vmcnt(0)")
    kstamp(a, 1)
    a.label(end)
    a("s_endpgm")
    return name, c.v_end, c.lds_bytes()


def gen_oproj_kernel(a):
    name = "oproj_kernel"
    c = GemmCfg(BM=128, BN=128, WM=2, WN=4, K=1024, lda=CTX_LD, ldb=1024, NS=5)
    kernel_header(a, name)
    end = a.uid("end")
    a("s_cmp_ge_u32 s2, 256")
    a(f"s_cbranch_scc1 {end}")
    a(f"s_load_dwordx2 s[40:41], s[0:1], {KA_WO}")
    a(f"s_load_dwordx2 s[44:45], s[0:1], {KA_WS}")
    a("s_and_b32 s46, s2, 7")
    a("s_lshl_b32 s46, s46, 1")
    a("s_bfe_u32 s47, s2, 0x10003")
    a("s_add_u32 s46, s46, s47")
    a("s_lshl_b32 s47, s46, 7")
    a("s_bfe_u32 s48, s2, 0x20004")
    a("s_lshl_b32 s48, s48, 7")
    a("s_lshr_b32 s49, s2, 6")
    a("s_lshl_b32 s50, s49, 10")
    a("s_waitcnt lgkmcnt(0)")
    make_srd(a, S_SRD_X, 44, WS_CTX, 2048 * CTX_LD)
    make_srd(a, S_SRD_W, 40, 0, 4 * MB)
    make_srd(a, 16, 44, WS_PART, 8 * MB)
    gemm_setup(a, c, 47, [48], 50)
    gemm_dma_prologue(a, c)
    gemm_read_addrs(a, c)
    gemm_mainloop(a, c)
    a("s_lshl_b32 s50, s49, 21")
    a(f"s_mul_i32 s51, s{S_WM}, {c.TM}")
    a("s_add_u32 s51, s51, s47")
    a("s_lshl_b32 s51, s51, 10")
    a("s_add_u32 s50, s50, s51")
    a(f"s_lshl_b32 s51, s{S_WN}, 5")
    a("s_add_u32 s51, s51, s48")
    a("s_lshl_b32 s51, s51, 1")
    a("s_add_u32 s50, s50, s51")
    pool = [c.v_A + 2 * i for i in range(4)]
    rowmajor_store(a, c, 1, plain_pack(a, c, pool), 16, 50, 1024)
    gstamp(a, c)
    if "g_stamp" in FLAGS:
        a("s_waitcnt vmcnt(0)")
    gstamp(a, c)
    if "k_stamp" in FLAGS:
        a("s_waitcnt vmcnt(0)")
    kstamp(a, 1)
    a.label(end)
    a("s_endpgm")
    return name, c.v_end, c.lds_bytes()


def gen_redln_kernel(a):
    name = "redln_kernel"
    kernel_header(a, name)
    end = a.uid("end")
    a("s_cmp_ge_u32 s2, 512")
    a(f"s_cbranch_scc1 {end}")
    a(f"s_load_dwordx2 s[36:37], s[0:1], {KA_X}")
    a(f"s_load_dwordx2 s[44:45], s[0:1], {KA_WS}")
    a("v_and_b32 v1, 63, v0")
    a("v_lshrrev_b32 v2, 6, v0")
    a("s_nop 0")
    a("v_readfirstlane_b32 s24, v2")
    a("s_nop 3")
    a("s_lshl_b32 s25, s2, 2")
    a("s_add_u32 s25, s25, s24")
    a("s_lshl_b32 s26, s25, 10")
    a("s_lshl_b32 s27, s25, 11")
    a("s_waitcnt lgkmcnt(0)")
    make_srd(a, 4, 36, 0, 2 * MB)
    make_srd(a, 8, 44, WS_PART, 8 * MB)
    make_srd(a, 12, 44, WS_H, 2 * MB)
    make_srd(a, 16, 44, WS_HN, 2 * MB)
    a("v_lshlrev_b32 v3, 4, v1")
    a("buffer_load_dwordx4 v[8:11], v3, s[4:7], s26 offen")
    for ks in range(4):
        a(f"s_add_u32 s28, s26, {ks * 2 * MB}")
        a(f"buffer_load_dwordx4 {vr(32 + 4 * ks, 4)}, v3, s[8:11], s28 offen")
    a("s_waitcnt vmcnt(0)")
    for i in range(4):
        a(f"v_lshlrev_b32 v{16 + 2 * i}, 16, v{32 + i}")
        a(f"v_and_b32 v{17 + 2 * i}, 0xffff0000, v{32 + i}")
    for ks in range(1, 4):
        for i in range(4):
            a(f"v_lshlrev_b32 v{24 + 2 * i}, 16, v{32 + 4 * ks + i}")
            a(f"v_and_b32 v{25 + 2 * i}, 0xffff0000, v{32 + 4 * ks + i}")
        for i in range(8):
            a(f"v_add_f32 v{16 + i}, v{16 + i}, v{24 + i}")
    for i in range(4):
        a(f"v_cvt_pk_bf16_f32 v{24 + i}, v{16 + 2 * i}, v{17 + 2 * i}")
    for i in range(4):
        a(f"v_lshlrev_b32 v{16 + 2 * i}, 16, v{24 + i}")
        a(f"v_and_b32 v{17 + 2 * i}, 0xffff0000, v{24 + i}")
        a(f"v_lshlrev_b32 v{32 + 2 * i}, 16, v{8 + i}")
        a(f"v_and_b32 v{33 + 2 * i}, 0xffff0000, v{8 + i}")
    for i in range(8):
        a(f"v_add_f32 v{16 + i}, v{16 + i}, v{32 + i}")
    for i in range(4):
        a(f"v_cvt_pk_bf16_f32 v{8 + i}, v{16 + 2 * i}, v{17 + 2 * i}")
    a("buffer_store_dwordx4 v[8:11], v3, s[12:15], s26 offen")
    ln_row(a, 8, 16, 60, 40)
    a("buffer_store_dwordx4 v[40:43], v3, s[16:19], s26 offen")
    if "k_stamp" in FLAGS:
        a("s_waitcnt vmcnt(0)")
    kstamp(a, 1)
    a.label(end)
    a("s_endpgm")
    return name, 48, 0


def rowmajor_store(a, c, nblocks, src_fn, srd_out, s_base, ld_out, resid=None):
    a("s_barrier")
    RBo, region = epilogue_to_lds(a, c, nblocks, src_fn)
    nad, rpi = epilogue_read_addrs(a, c, RBo, region, c.v_va)
    L, t = c.v_lane, c.v_t
    cpr = RBo // 16
    lg = cpr.bit_length() - 1
    a(f"v_lshrrev_b32 v{t}, {lg}, v{L}")
    a(f"s_mov_b32 s{S_T0}, {ld_out}")
    a(f"v_mul_lo_u32 v{t}, v{t}, s{S_T0}")
    a(f"v_and_b32 v{t + 1}, {cpr - 1}, v{L}")
    a(f"v_lshl_add_u32 v{c.v_x}, v{t + 1}, 4, v{t}")
    nins = c.TM // rpi
    R = c.v_acc
    if resid is not None:
        for i in range(nins):
            a(f"s_add_u32 s{S_T0}, s{s_base}, {i * rpi * ld_out}")
            a(f"buffer_load_dwordx4 {vr(R + 4 * nins + 4 * i, 4)}, v{c.v_x}, s[{resid}:{resid + 3}], s{S_T0} offen")
    a("s_waitcnt lgkmcnt(0)")
    for i in range(nins):
        a(f"ds_read_b128 {vr(R + 4 * i, 4)}, v{c.v_va + (i % nad)} offset:{i * rpi * RBo}")
    if resid is not None:
        a("s_waitcnt vmcnt(0) lgkmcnt(0)")
        for i in range(nins):
            for q in range(4):
                x0 = R + 4 * i + q
                y0 = R + 4 * nins + 4 * i + q
                a(f"v_lshlrev_b32 v{t}, 16, v{x0}")
                a(f"v_and_b32 v{t + 1}, 0xffff0000, v{x0}")
                a(f"v_lshlrev_b32 v{t + 2}, 16, v{y0}")
                a(f"v_and_b32 v{t + 3}, 0xffff0000, v{y0}")
                a(f"v_add_f32 v{t}, v{t}, v{t + 2}")
                a(f"v_add_f32 v{t + 1}, v{t + 1}, v{t + 3}")
                a(f"v_cvt_pk_bf16_f32 v{x0}, v{t}, v{t + 1}")
    for i in range(nins):
        if resid is None:
            a(f"s_waitcnt lgkmcnt({min(15, nins - 1 - i)})")
        a(f"s_add_u32 s{S_T0}, s{s_base}, {i * rpi * ld_out}")
        a(f"buffer_store_dwordx4 {vr(R + 4 * i, 4)}, v{c.v_x}, s[{srd_out}:{srd_out + 3}], s{S_T0} offen")


def gen_glu_kernel(a):
    name = "glu_kernel"
    c = GemmCfg(BM=128, BN=256, WM=2, WN=4, K=512, lda=1024, ldb=3584, nsub=2, NS=3)
    kernel_header(a, name)
    end = a.uid("end")
    a("s_cmp_ge_u32 s2, 224")
    a(f"s_cbranch_scc1 {end}")
    a(f"s_load_dwordx4 s[40:43], s[0:1], {KA_WG}")
    a(f"s_load_dwordx2 s[44:45], s[0:1], {KA_WS}")
    a("s_and_b32 s47, s2, 15")
    a("s_lshl_b32 s47, s47, 7")
    a("s_lshr_b32 s48, s2, 4")
    a("s_lshl_b32 s48, s48, 7")
    a("s_waitcnt lgkmcnt(0)")
    make_srd(a, S_SRD_X, 44, WS_HN, 2 * MB)
    make_srd(a, S_SRD_W, 40, 0, 512 * 1792 * 2)
    make_srd(a, S_SRD_W + 4, 42, 0, 512 * 1792 * 2)
    make_srd(a, 16, 44, WS_HH, 2048 * 1792 * 2)
    gemm_setup(a, c, 47, [48, 48])
    gemm_dma_prologue(a, c)
    gemm_read_addrs(a, c)
    gemm_mainloop(a, c)
    a(f"s_mul_i32 s50, s{S_WM}, {c.TM}")
    a("s_add_u32 s50, s50, s47")
    a("s_mul_i32 s50, s50, 3584")
    a(f"s_lshl_b32 s51, s{S_WN}, 5")
    a("s_add_u32 s51, s51, s48")
    a("s_lshl_b32 s51, s51, 1")
    a("s_add_u32 s50, s50, s51")
    a(f"s_mov_b32 s52, 0xbfb8aa3b")
    pool = [c.v_A + 2 * i for i in range(4)]
    tmp = c.v_A + 8
    st = {"i": 0}

    def src(nb, mt, j):
        p = pool[st["i"] % len(pool)]
        st["i"] += 1
        g = c.acc(0, mt) + 4 * j
        u = c.acc(1, mt) + 4 * j
        for half in range(2):
            g0, g1, u0, u1 = g + 2 * half, g + 2 * half + 1, u + 2 * half, u + 2 * half + 1
            a(f"v_cvt_pk_bf16_f32 v{tmp}, v{g0}, v{g1}")
            a(f"v_cvt_pk_bf16_f32 v{tmp + 1}, v{u0}, v{u1}")
            a(f"v_lshlrev_b32 v{g0}, 16, v{tmp}")
            a(f"v_and_b32 v{g1}, 0xffff0000, v{tmp}")
            a(f"v_mul_f32 v{g0}, s52, v{g0}")
            a(f"v_mul_f32 v{g1}, s52, v{g1}")
            a(f"v_exp_f32 v{g0}, v{g0}")
            a(f"v_exp_f32 v{g1}, v{g1}")
            a(f"v_lshlrev_b32 v{u0}, 16, v{tmp + 1}")
            a(f"v_and_b32 v{u1}, 0xffff0000, v{tmp + 1}")
            a(f"v_add_f32 v{g0}, 1.0, v{g0}")
            a(f"v_add_f32 v{g1}, 1.0, v{g1}")
            a(f"v_rcp_f32 v{g0}, v{g0}")
            a(f"v_rcp_f32 v{g1}, v{g1}")
            a("s_nop 0")
            a(f"v_cvt_pk_bf16_f32 v{tmp}, v{g0}, v{g1}")
            a(f"v_lshlrev_b32 v{g0}, 16, v{tmp}")
            a(f"v_and_b32 v{g1}, 0xffff0000, v{tmp}")
            a(f"v_mul_f32 v{g0}, v{g0}, v{u0}")
            a(f"v_mul_f32 v{g1}, v{g1}, v{u1}")
            a(f"v_cvt_pk_bf16_f32 v{p + half}, v{g0}, v{g1}")
        return p
    rowmajor_store(a, c, 1, src, 16, 50, 3584)
    gstamp(a, c)
    if "g_stamp" in FLAGS:
        a("s_waitcnt vmcnt(0)")
    gstamp(a, c)
    if "k_stamp" in FLAGS:
        a("s_waitcnt vmcnt(0)")
    kstamp(a, 1)
    a.label(end)
    a("s_endpgm")
    return name, c.v_end, c.lds_bytes()


def gen_down_kernel(a):
    name = "down_kernel"
    c = GemmCfg(BM=64, BN=64, WM=2, WN=2, K=1792, lda=3584, ldb=1024, NS=8)
    kernel_header(a, name)
    end = a.uid("end")
    a("s_cmp_ge_u32 s2, 256")
    a(f"s_cbranch_scc1 {end}")
    a(f"s_load_dwordx4 s[40:43], s[0:1], {KA_WD}")
    a(f"s_load_dwordx2 s[44:45], s[0:1], {KA_WS}")
    a("s_and_b32 s46, s2, 7")
    a("s_lshl_b32 s46, s46, 2")
    a("s_bfe_u32 s47, s2, 0x20003")
    a("s_add_u32 s46, s46, s47")
    a("s_lshl_b32 s47, s46, 6")
    a("s_lshr_b32 s48, s2, 5")
    a("s_lshl_b32 s48, s48, 6")
    a("s_waitcnt lgkmcnt(0)")
    make_srd(a, S_SRD_X, 44, WS_HH, 2048 * 1792 * 2)
    make_srd(a, S_SRD_W, 40, 0, 1792 * 512 * 2)
    make_srd(a, 16, 42, 0, 2 * MB)
    make_srd(a, 20, 44, WS_H, 2 * MB)
    gemm_setup(a, c, 47, [48])
    gemm_dma_prologue(a, c)
    gemm_read_addrs(a, c)
    gemm_mainloop(a, c)
    a(f"s_mul_i32 s50, s{S_WM}, {c.TM}")
    a("s_add_u32 s50, s50, s47")
    a("s_lshl_b32 s50, s50, 10")
    a(f"s_lshl_b32 s51, s{S_WN}, 5")
    a("s_add_u32 s51, s51, s48")
    a("s_lshl_b32 s51, s51, 1")
    a("s_add_u32 s50, s50, s51")
    pool = [c.v_A + 2 * i for i in range(4)]
    rowmajor_store(a, c, 1, plain_pack(a, c, pool), 16, 50, 1024, resid=20)
    gstamp(a, c)
    if "g_stamp" in FLAGS:
        a("s_waitcnt vmcnt(0)")
    gstamp(a, c)
    if "k_stamp" in FLAGS:
        a("s_waitcnt vmcnt(0)")
    kstamp(a, 1)
    a.label(end)
    a("s_endpgm")
    return name, max(c.v_end, c.v_acc + 16), c.lds_bytes()


HEADER = open("sequential_preLN__compressed_kv_cla__glu_gated_glu__prompt.s.ref").read().split("; Override launch")[0]


def build(kernels):
    a = Asm()
    a.raw('.amdgcn_target "amdgcn-amd-amdhsa--gfx950"')
    a.raw(".text")
    infos = []
    for g, grid, block in kernels:
        name, nv, lds = g(a)
        infos.append((name, nv, lds, grid, block))
    a.raw('.section .rodata,"a"')
    for name, nv, lds, grid, block in infos:
        kernel_descriptor(a, name, nv)
    head = HEADER
    pol = os.environ.get("STPOL", "")
    if pol:
        a.lines = [(l + " " + pol) if l.strip().startswith("buffer_store_dwordx4") else l for l in a.lines]
    for name, nv, lds, grid, block in infos:
        head += f"; @launch kernel={name} grid=({grid},1,1) block=({block},1,1) lds={lds}\n"
    return head + a.text()


if __name__ == "__main__":
    ks = [(gen_kv_kernel, 256, 512),
          (lambda a: gen_attn_kernel(a, WS_XN, WS_K, WS_V, WS_CTX, KA_WS, KA_WQ, CTX_LD), 256, 512),
          (gen_oproj_kernel, 256, 512), (gen_redln_kernel, 512, 256), (gen_glu_kernel, 224, 512),
          (gen_down_kernel, 256, 256)]
    out = build(ks)
    dst = sys.argv[1] if len(sys.argv) > 1 else "sequential_preLN__compressed_kv_cla__glu_gated_glu__prompt.s"
    open(dst, "w").write(out)
    print("written", len(out))
```

```python
import os
from asmlib import *
from gemm import (epilogue_to_lds, epilogue_read_addrs, S_WAVE, S_T0, S_T1, GemmCfg, gemm_setup,
                  gemm_dma_prologue, gemm_read_addrs, gemm_mainloop, S_SRD_X, S_SRD_W)

MB = 1 << 20
FLAGS = set(os.environ.get("GENFLAGS", "").split(","))


class Shim:
    pass


class LdsTrack:
    def __init__(self, a):
        self.a = a
        self.q = []
        self.done = -1

    def read(self, text, tag):
        if "a_nolds" not in FLAGS:
            self.a(text)
        self.q.append(tag)

    def wait(self, tag):
        idx = max(i for i, t in enumerate(self.q) if t == tag)
        if idx <= self.done:
            return
        n = len(self.q) - 1 - idx
        n = min(n, 15)
        self.a(f"s_waitcnt lgkmcnt({n})")
        self.done = len(self.q) - 1 - n


def gen_attn_kernel(a, WS_XN, WS_K, WS_V, WS_CTX, KA_WS, KA_WQ, CTX_LD=8192):
    name = "attn_kernel"
    kernel_header(a, name)
    end = a.uid("end")
    L = 1
    T = 2
    V_DK = 12
    V_DV = 13
    V_KA = 14
    V_VA = 22
    V_M = 26
    V_L = 27
    V_AL = 28
    V_MQ = 29
    V_QO = 30
    V_NEG = 31
    V_Q = 32
    V_O = 64
    V_S = 128
    NF = 6
    V_KF = 192
    V_VF = 216
    V_NM = 240
    V_END = 256
    S_G, S_WQ, S_HB, S_QB, S_N, S_KO, S_I, S_C, S_M0, S_PH, S_VO = 34, 35, 36, 37, 38, 39, 40, 41, 42, 43, 52
    S_MASK = 44
    S_XO, S_XP, S_KF = 53, 63, 64

    a("s_cmp_ge_u32 s2, 256")
    a(f"s_cbranch_scc1 {end}")
    a(f"s_load_dwordx2 s[20:21], s[0:1], {KA_WS}")
    a(f"s_load_dwordx2 s[66:67], s[0:1], {KA_WQ}")
    a(f"v_lshrrev_b32 v{T}, 6, v0")
    a("s_nop 0")
    a(f"v_readfirstlane_b32 s{S_WAVE}, v{T}")
    a("s_nop 3")
    a(f"s_lshr_b32 s{S_G}, s{S_WAVE}, 2")
    a(f"s_and_b32 s{S_WQ}, s{S_WAVE}, 3")
    a(f"s_and_b32 s{S_HB}, s2, 7")
    a(f"s_lshl_b32 s{S_HB}, s{S_HB}, 2")
    a(f"s_bfe_u32 s{S_T0}, s2, 0x20003")
    a(f"s_add_u32 s{S_HB}, s{S_HB}, s{S_T0}")
    a(f"s_lshl_b32 s22, s{S_HB}, 8")
    a(f"s_lshl_b32 s68, s{S_HB}, 7")
    a(f"s_lshl_b32 s{S_HB}, s{S_HB}, 19")
    a("s_lshr_b32 s23, s2, 5")
    a(f"s_mov_b32 s{S_C}, 0x41f00000")
    a(f"s_lshl_b32 s{S_M0}, s{S_G}, 16")
    a(f"s_lshl_b32 s{S_T0}, s{S_WQ}, 10")
    a(f"s_add_u32 s{S_M0}, s{S_M0}, s{S_T0}")
    a(f"s_sub_u32 s{S_QB}, 15, s23")
    a(f"s_cmp_eq_u32 s{S_G}, 0")
    a(f"s_cselect_b32 s69, s{S_QB}, s23")
    a("s_lshl_b32 s69, s69, 7")
    a(f"s_lshl_b32 s{S_T0}, s{S_G}, 5")
    a(f"s_sub_u32 s69, s69, s{S_T0}")
    qc = GemmCfg(BM=256, BN=128, WM=4, WN=2, K=512, lda=1024, ldb=8192, NS=3, x_piece_rows=32,
                 vmap=dict(v_x=V_S + 32, v_w=V_S + 33, v_va=V_S + 36, v_vb=V_S + 40, v_A=V_S, v_B=V_S + 16, v_acc=V_O))
    a("s_waitcnt lgkmcnt(0)")
    make_srd(a, S_SRD_X, 20, WS_XN, 2 * MB)
    make_srd(a, S_SRD_W, 66, 0, 4 * MB)
    gemm_setup(a, qc, 69, [68])
    gemm_dma_prologue(a, qc)
    gemm_read_addrs(a, qc)
    a(f"v_lshrrev_b32 v{T}, 4, v{L}")
    a(f"v_and_b32 v{T + 1}, 15, v{L}")
    a(f"s_lshl_b32 s{S_T0}, s{S_WQ}, 2")
    a(f"v_add_u32 v{T + 2}, s{S_T0}, v{T}")
    a(f"v_xor_b32 v{T + 2}, v{T + 2}, v{T + 1}")
    a(f"v_lshlrev_b32 v{T + 2}, 4, v{T + 2}")
    a(f"v_lshl_add_u32 v{V_DK}, v{T}, 8, v{T + 2}")
    a(f"v_lshlrev_b32 v{T + 2}, 2, v{T}")
    a(f"v_xor_b32 v{T + 2}, v{T + 2}, v{T + 1}")
    a(f"v_lshlrev_b32 v{T + 2}, 4, v{T + 2}")
    a(f"v_lshl_add_u32 v{V_DV}, v{T}, 8, v{T + 2}")
    a(f"v_and_b32 v{T}, 31, v{L}")
    a(f"v_and_b32 v{T + 1}, 15, v{L}")
    a(f"v_lshrrev_b32 v{T + 2}, 5, v{L}")
    a(f"v_xor_b32 v{T + 1}, v{T + 1}, v{T + 2}")
    a(f"v_lshlrev_b32 v{T}, 8, v{T}")
    a(f"s_lshl_b32 s{S_T0}, s{S_G}, 16")
    a(f"v_add_u32 v{T}, s{S_T0}, v{T}")
    for s in range(8):
        a(f"v_xor_b32 v{T + 3}, {2 * s}, v{T + 1}")
        a(f"v_lshl_add_u32 v{V_KA + s}, v{T + 3}, 4, v{T}")
    a(f"v_and_b32 v{T}, 15, v{L}")
    a(f"v_lshrrev_b32 v{T + 1}, 2, v{T}")
    a(f"v_and_b32 v{T + 2}, 3, v{T}")
    a(f"v_lshrrev_b32 v{T + 3}, 5, v{L}")
    a(f"v_lshl_add_u32 v{T + 3}, v{T + 3}, 2, v{T + 1}")
    a(f"v_lshlrev_b32 v{T + 3}, 8, v{T + 3}")
    a(f"v_and_b32 v{T + 4}, 1, v{T + 2}")
    a(f"v_lshl_add_u32 v{T + 3}, v{T + 4}, 3, v{T + 3}")
    a(f"v_lshrrev_b32 v{T + 4}, 1, v{T + 2}")
    a(f"v_bfe_u32 v{T + 5}, v{L}, 4, 1")
    a(f"v_lshl_add_u32 v{T + 4}, v{T + 5}, 1, v{T + 4}")
    a(f"v_lshl_add_u32 v{T + 3}, v{T + 4}, 4, v{T + 3}")
    a(f"s_add_u32 s{S_T0}, s{S_T0}, 16384")
    a(f"v_add_u32 v{T + 3}, s{S_T0}, v{T + 3}")
    for db in range(4):
        a(f"v_xor_b32 v{T + 4}, {db}, v{T + 1}")
        a(f"v_lshl_add_u32 v{V_VA + db}, v{T + 4}, 6, v{T + 3}")
    a(f"v_and_b32 v{T}, 31, v{L}")
    a(f"s_lshl_b32 s{S_T0}, s{S_WQ}, 5")
    a(f"s_lshl_b32 s{S_T1}, s{S_G}, 6")
    a(f"s_sub_u32 s{S_T0}, s{S_T0}, s{S_T1}")
    a(f"v_add_u32 v{T}, s{S_T0}, v{T}")
    a(f"v_lshrrev_b32 v{T + 1}, 5, v{L}")
    a(f"v_lshlrev_b32 v{T + 1}, 2, v{T + 1}")
    a(f"v_sub_u32 v{V_MQ}, v{T}, v{T + 1}")
    a(f"v_and_b32 v{T}, 31, v{L}")
    a(f"v_lshrrev_b32 v{T + 1}, 5, v{L}")
    a(f"v_lshlrev_b32 v{T + 1}, 4, v{T + 1}")
    a(f"v_lshl_add_u32 v{V_QO}, v{T}, 8, v{T + 1}")
    a(f"v_mov_b32 v{V_NEG}, 0xf149f2ca")
    a(f"s_mov_b32 s{S_PH}, 0")

    def dma(which, buf):
        if "a_nodma" in FLAGS:
            return
        vo, srd, so = ((V_DK, 8, S_KO), (V_DV, 12, S_VO))[which]
        for t in range(4):
            a(f"s_add_u32 m0, s{S_M0}, {buf * 32768 + which * 16384 + t * 4096}")
            if t == 0:
                a("s_nop 0")
                a(f"buffer_load_dwordx4 v{vo}, s[{srd}:{srd + 3}], s{so} offen lds")
            else:
                a(f"s_add_u32 s{S_T0}, s{so}, {t * 4096}")
                a(f"buffer_load_dwordx4 v{vo}, s[{srd}:{srd + 3}], s{S_T0} offen lds")
        a(f"s_add_u32 s{so}, s{so}, 32768")

    def dma_piece(which, buf, t, cond):
        if "a_nodma" in FLAGS:
            return []
        vo, srd, so = ((V_DK, 8, S_KO), (V_DV, 12, S_VO))[which]
        ops = []
        lab = None
        if cond is not None:
            lab = a.uid("nop")
            ops.append(f"s_cmp_eq_u32 s{cond}, 0")
            ops.append(f"s_cbranch_scc1 {lab}")
        ops.append(f"s_add_u32 m0, s{S_M0}, {buf * 32768 + which * 16384 + t * 4096}")
        ops.append(f"s_add_u32 s{S_T0}, s{so}, {t * 4096}")
        ops.append(f"buffer_load_dwordx4 v{vo}, s[{srd}:{srd + 3}], s{S_T0} offen lds")
        if t == 3:
            ops.append(f"s_add_u32 s{so}, s{so}, 32768")
        if lab is not None:
            ops.append(lab + ":")
        return ops

    def emit(op):
        if op.endswith(":"):
            a.label(op[:-1])
        else:
            a(op)

    def exp_ops(Sp, lo, hi):
        ops = []
        G = 4
        prev = None
        for g0 in range(lo, hi, G):
            for r in range(g0, g0 + G):
                ops.append(f"v_exp_f32 v{Sp + r}, v{Sp + r}")
            if prev is not None:
                ops += adds_and_pack(Sp, prev, prev == 0)
            prev = g0
        ops.append("s_nop 0")
        ops += adds_and_pack(Sp, prev, prev == 0)
        if hi == 32 and "a_dot" not in FLAGS:
            ops.append(f"v_add_f32 v{V_L}, v{V_L}, v{T + 8}")
            ops.append(f"v_add_f32 v{V_L}, v{V_L}, v{T + 9}")
        return ops

    def adds_and_pack(Sp, g0, first):
        ops = []
        if "a_dot" in FLAGS:
            ops.append(f"v_cvt_pk_bf16_f32 v{Sp + g0 // 2}, v{Sp + g0}, v{Sp + g0 + 1}")
            ops.append(f"v_cvt_pk_bf16_f32 v{Sp + g0 // 2 + 1}, v{Sp + g0 + 2}, v{Sp + g0 + 3}")
            ops.append(f"v_dot2c_f32_bf16 v{V_L}, v{Sp + g0 // 2}, v{V_QO}")
            ops.append(f"v_dot2c_f32_bf16 v{V_AL}, v{Sp + g0 // 2 + 1}, v{V_QO}")
            return ops
        if first:
            ops.append(f"v_add_f32 v{T + 8}, v{Sp + g0}, v{Sp + g0 + 1}")
            ops.append(f"v_add_f32 v{T + 9}, v{Sp + g0 + 2}, v{Sp + g0 + 3}")
        else:
            ops.append(f"v_add_f32 v{T + 8}, v{T + 8}, v{Sp + g0}")
            ops.append(f"v_add_f32 v{T + 9}, v{T + 9}, v{Sp + g0 + 1}")
            ops.append(f"v_add_f32 v{T + 8}, v{T + 8}, v{Sp + g0 + 2}")
            ops.append(f"v_add_f32 v{T + 9}, v{T + 9}, v{Sp + g0 + 3}")
        ops.append(f"v_cvt_pk_bf16_f32 v{Sp + g0 // 2}, v{Sp + g0}, v{Sp + g0 + 1}")
        ops.append(f"v_cvt_pk_bf16_f32 v{Sp + g0 // 2 + 1}, v{Sp + g0 + 2}, v{Sp + g0 + 3}")
        return ops

    def max_ops(Sc):
        ops = []
        ops.append(f"v_max3_f32 v{T}, v{Sc}, v{Sc + 1}, v{Sc + 2}")
        ops.append(f"v_max3_f32 v{T + 1}, v{Sc + 3}, v{Sc + 4}, v{Sc + 5}")
        for r in range(6, 30, 4):
            ops.append(f"v_max3_f32 v{T}, v{T}, v{Sc + r}, v{Sc + r + 1}")
            ops.append(f"v_max3_f32 v{T + 1}, v{T + 1}, v{Sc + r + 2}, v{Sc + r + 3}")
        ops.append(f"v_max3_f32 v{T}, v{T}, v{Sc + 30}, v{Sc + 31}")
        ops.append(f"v_max_f32 v{T}, v{T}, v{T + 1}")
        return ops

    def max_update(Sc, first):
        a(f"v_mov_b32 v{T + 1}, v{T}")
        a("s_nop 1")
        a(f"v_permlane32_swap_b32 v{T}, v{T + 1}")
        a(f"v_max_f32 v{T}, v{T}, v{T + 1}")
        if first:
            a(f"v_max_f32 v{T}, 0xe0ad78ec, v{T}")
        else:
            a(f"v_max_f32 v{T}, 0, v{T}")
        a(f"v_exp_f32 v{V_AL}, -v{T}")
        a(f"v_add_f32 v{V_M}, v{V_M}, v{T}")
        for r in range(32):
            a(f"v_sub_f32 v{Sc + r}, v{Sc + r}, v{T}")
        for r in range(16):
            a(f"v_sub_f32 v{V_NM + r}, 0, v{V_M}")
        if not first:
            a(f"v_mul_f32 v{V_L}, v{V_L}, v{V_AL}")
            for r in range(64):
                a(f"v_mul_f32 v{V_O + r}, v{V_O + r}, v{V_AL}")

    def v_read(tr, f, vbuf):
        ks, db = f // 4, f % 4
        F = V_VF + (f % NF) * 4
        tr.read(f"ds_read_b64_tr_b16 {vr(F, 2)}, v{V_VA + db} offset:{vbuf * 32768 + 16 * ks * 256}", ("v", f))
        tr.read(f"ds_read_b64_tr_b16 {vr(F + 2, 2)}, v{V_VA + db} offset:{vbuf * 32768 + (16 * ks + 8) * 256}", ("v", f))

    def k_read(tr, f, kbuf, nxt=False):
        kb, s = f % 2, f // 2
        F = V_KF + (f % NF) * 4
        tr.read(f"ds_read_b128 {vr(F, 4)}, v{V_KA + s} offset:{kbuf * 32768 + kb * 8192}", ("kn" if nxt else "k", f))

    SPLIT = int(os.environ.get("ATT_SPLIT", "24"))
    HB = int(os.environ.get("ATT_HB", "12"))
    GM = int(os.environ.get("ATT_GM", "1"))

    def next_head(tr, par):
        a("s_waitcnt vmcnt(0) lgkmcnt(0)")
        tr.done = len(tr.q) - 1
        if "a_nobar" not in FLAGS:
            a("s_barrier")
        stamp()
        for f in range(NF):
            k_read(tr, f, par ^ 1, nxt=True)
        a(f"s_add_u32 s{S_I}, s{S_I}, 1")
        a(f"s_add_u32 s{S_T1}, s{S_I}, 1")
        a(f"s_cmp_lt_u32 s{S_T1}, s{S_N}")
        a(f"s_cselect_b32 s{S_KF}, 1, 0")

    def iteration(par, do_qk, do_prev, may_mask, hook=None, first_pv=False):
        Sc = V_S + 32 * par
        Sp = V_S + 32 * (par ^ 1)
        tr = LdsTrack(a)
        novalu = "a_novalu" in FLAGS
        va = exp_ops(Sp, 0, SPLIT) if (do_prev and not novalu) else []
        if do_prev:
            tr.q = [("k", f) for f in range(NF)]
        if do_qk and not do_prev:
            for f in range(NF):
                k_read(tr, f, par)
        elif not do_qk:
            for f in range(NF):
                v_read(tr, f, par ^ 1)
        if hook is not None:
            hook()
        nm = 16 if do_qk else 0
        per = (len(va) + max(nm, 1) - 1) // max(nm, 1)
        xg = {f: [] for f in range(16)}
        if do_qk:
            for t in range(4):
                xg[2 * t] += dma_piece(0, par ^ 1, t, S_KF)
                xg[8 + 2 * t] += dma_piece(1, par, t, None)
        vi = 0
        for f0 in range(0, nm, GM):
            tr.wait(("k", f0 + GM - 1))
            for f in range(f0, f0 + GM):
                kb, s = f % 2, f // 2
                D = Sc + 16 * kb
                C = vr(V_NM, 16) if s == 0 else vr(D, 16)
                if "a_nomfma" not in FLAGS:
                    a(f"v_mfma_f32_32x32x16_bf16 {vr(D, 16)}, {vr(V_KF + (f % NF) * 4, 4)}, {vr(V_Q + 4 * s, 4)}, {C}")
            for f in range(f0, f0 + GM):
                if f + NF < 16:
                    k_read(tr, f + NF, par)
                elif do_prev:
                    v_read(tr, f + NF - 16, par ^ 1)
            for f in range(f0, f0 + GM):
                for op in xg[f]:
                    emit(op)
                for op in va[vi:vi + per]:
                    a(op)
                vi += per
        for op in va[vi:]:
            a(op)
        if do_qk and may_mask:
            nomask = a.uid("nomask")
            a(f"s_cmp_lg_u32 s{S_KF}, 0")
            a(f"s_cbranch_scc1 {nomask}")
            a("s_nop 7")
            a("s_nop 3")
            for r0 in range(0, 32, 4):
                for i in range(4):
                    r = r0 + i
                    key = (r >> 4) * 32 + ((r & 15) >> 2) * 8 + (r & 3)
                    a(f"v_cmp_le_i32 s[{S_MASK + 2 * i}:{S_MASK + 2 * i + 1}], {key}, v{V_MQ}")
                a("s_nop 1")
                for i in range(4):
                    r = r0 + i
                    a(f"v_cndmask_b32 v{Sc + r}, v{V_NEG}, v{Sc + r}, s[{S_MASK + 2 * i}:{S_MASK + 2 * i + 1}]")
            a.label(nomask)
        vb = max_ops(Sc) if (do_qk and "a_nomax" not in FLAGS) else []
        if not do_prev:
            a("s_nop 7")
            a("s_nop 3")
            for op in vb:
                a(op)
            next_head(tr, par)
            max_update(Sc, True)
            return
        a("s_nop 1")
        gaps = {f: [] for f in range(16)}
        v2 = exp_ops(Sp, SPLIT, 32) if not novalu else []
        nks = SPLIT // 8
        span = list(range(0, 4 * nks - GM))
        per = (len(v2) + len(span) - 1) // len(span)
        for k, f in enumerate(span):
            gaps[f] += v2[k * per:(k + 1) * per]
        if do_qk:
            span = list(range(5, 14))
            per = (len(vb) + len(span) - 1) // len(span)
            for k, f in enumerate(span):
                gaps[f] += vb[k * per:(k + 1) * per]
            gaps[14].append(f"v_cmp_lt_f32 vcc, s{S_C}, v{T}")
        gaps[4 * nks - 1].append("s_nop 1")
        for f0 in range(0, 16, GM):
            if do_qk and f0 == HB:
                next_head(tr, par)
            tr.wait(("v", f0 + GM - 1))
            for f in range(f0, f0 + GM):
                ks, db = f // 4, f % 4
                D = V_O + 16 * db
                Cc = "0" if (first_pv and ks == 0) else vr(D, 16)
                if "a_nomfma" not in FLAGS:
                    a(f"v_mfma_f32_32x32x16_bf16 {vr(D, 16)}, {vr(V_VF + (f % NF) * 4, 4)}, {vr(Sp + 4 * ks, 4)}, {Cc}")
            for f in range(f0, f0 + GM):
                if f + NF < 16:
                    v_read(tr, f + NF, par ^ 1)
            for f in range(f0, f0 + GM):
                for op in gaps[f]:
                    a(op)
        if do_qk:
            skip = a.uid("norescale")
            a(f"s_cbranch_vccz {skip}")
            a("s_nop 7")
            a("s_nop 3")
            max_update(Sc, False)
            a.label(skip)

    def stamp(real=False):
        if "a_stamp" not in FLAGS:
            return
        sk = a.uid("nostamp")
        a(f"s_or_b32 s{S_T0}, s2, s{S_WAVE}")
        a(f"s_cmp_lg_u32 s{S_T0}, 0")
        a(f"s_cbranch_scc1 {sk}")
        a("s_memrealtime s[60:61]" if real else "s_memtime s[60:61]")
        a("s_waitcnt lgkmcnt(0)")
        a(f"v_mov_b32 v{T + 7}, s60")
        a(f"v_mov_b32 v{T + 6}, s62")
        a(f"buffer_store_dword v{T + 7}, v{T + 6}, s[56:59], 0 offen")
        a("s_add_u32 s62, s62, 4")
        a.label(sk)

    def iter_head(par, vm=0):
        a(f"s_waitcnt vmcnt({vm})")
        a("s_barrier")
        stamp()
        a(f"s_add_u32 s{S_T1}, s{S_I}, 1")
        a(f"s_cmp_lt_u32 s{S_T1}, s{S_N}")
        a(f"s_cselect_b32 s{S_KF}, 1, 0")

    QIMG = (16384, 131072)

    def k0_dma():
        a(f"s_lshl_b32 s{S_KO}, s{S_G}, 14")
        a(f"s_add_u32 s{S_KO}, s{S_KO}, s{S_HB}")
        a(f"s_lshl_b32 s{S_T0}, s{S_WQ}, 10")
        a(f"s_add_u32 s{S_KO}, s{S_KO}, s{S_T0}")
        a(f"s_mov_b32 s{S_VO}, s{S_KO}")
        dma(0, 0)

    def q_frag_reads(blk):
        a(f"s_lshl_b32 s{S_T0}, s{S_G}, 16")
        a(f"s_lshl_b32 s{S_T1}, s{S_WQ}, 13")
        a(f"s_sub_u32 s{S_T0}, s{S_T1}, s{S_T0}")
        a(f"s_add_u32 s{S_T0}, s{S_T0}, {QIMG[blk]}")
        for s in range(8):
            a(f"v_add_u32 v{T + 7}, s{S_T0}, v{V_KA + s}")
            a(f"ds_read_b128 {vr(V_Q + 4 * s, 4)}, v{T + 7}")

    def next_phase_hook():
        sk = a.uid("nonext")
        jn = a.uid("hookj")
        a(f"s_cmp_lg_u32 s{S_PH}, 0")
        a(f"s_cbranch_scc1 {sk}")
        k0_dma()
        q_frag_reads(1)
        a("s_waitcnt lgkmcnt(0)")
        a(f"s_branch {jn}")
        a.label(sk)
        if "a_nopf" not in FLAGS:
            a(f"v_lshlrev_b32 v{V_Q + 31}, 4, v{L}")
            make_srd(a, 76, 66, 0, 4 * MB)
            a(f"buffer_load_dwordx4 {vr(V_Q, 4)}, v{V_Q + 31}, s[76:79], s74 offen")
            a(f"buffer_load_dwordx4 {vr(V_Q + 4, 4)}, v{V_Q + 31}, s[76:79], s74 offen offset:1024")
            for k, pr in enumerate((68, 70, 72)):
                make_srd(a, 76, pr, 0, 512 * 1792 * 2)
                a(f"buffer_load_dwordx4 {vr(V_Q + 8 + 4 * k, 4)}, v{V_Q + 31}, s[76:79], s75 offen")
        a.label(jn)

    if "a_stamp" in FLAGS:
        a("s_load_dwordx2 s[54:55], s[0:1], 88")
        a("s_waitcnt lgkmcnt(0)")
        make_srd(a, 56, 54, 0, 256)
        a("s_mov_b32 s62, 0")
    def wgstamp(slot):
        if "a_wgstamp" not in FLAGS:
            return
        sk = a.uid("nowgs")
        a(f"s_cmp_lg_u32 s{S_WAVE}, 0")
        a(f"s_cbranch_scc1 {sk}")
        a("s_memrealtime s[60:61]")
        make_srd(a, 56, 20, 200 * MB, 65536)
        a("s_waitcnt lgkmcnt(0)")
        a(f"v_mov_b32 v{T + 7}, s60")
        a(f"s_lshl_b32 s{S_T0}, s2, 4")
        a(f"s_add_u32 s{S_T0}, s{S_T0}, {slot * 4}")
        a(f"v_mov_b32 v{T + 6}, s{S_T0}")
        a(f"buffer_store_dword v{T + 7}, v{T + 6}, s[56:59], 0 offen")
        if slot == 0:
            a("s_getreg_b32 s60, hwreg(HW_REG_HW_ID)")
            a("s_getreg_b32 s61, hwreg(HW_REG_XCC_ID)")
            a(f"v_mov_b32 v{T + 7}, s60")
            a(f"buffer_store_dword v{T + 7}, v{T + 6}, s[56:59], 0 offen offset:8")
            a(f"v_mov_b32 v{T + 7}, s61")
            a(f"buffer_store_dword v{T + 7}, v{T + 6}, s[56:59], 0 offen offset:12")
        a.label(sk)
    wgstamp(0)
    gemm_mainloop(a, qc)
    make_srd(a, 8, 20, WS_K, 16 * MB)
    make_srd(a, 12, 20, WS_V, 16 * MB)
    make_srd(a, 16, 20, WS_CTX, 2048 * CTX_LD)
    a("s_barrier")
    k0_dma()
    a(f"s_mov_b32 s{S_T1}, 0x3e0293ee")
    a(f"v_and_b32 v{T}, 31, v{L}")
    a(f"s_lshl_b32 s{S_T0}, s{S_WQ}, 5")
    a(f"v_add_u32 v{T + 1}, s{S_T0}, v{T}")
    a(f"v_lshlrev_b32 v{T + 1}, 8, v{T + 1}")
    a(f"v_lshrrev_b32 v{T + 2}, 5, v{L}")
    a(f"v_lshl_add_u32 v{T + 1}, v{T + 2}, 3, v{T + 1}")
    a(f"v_add_u32 v{T + 5}, {QIMG[1]}, v{T + 1}")
    a(f"v_add_u32 v{T + 1}, {QIMG[0]}, v{T + 1}")
    a(f"v_and_b32 v{T + 2}, 15, v{T}")
    a(f"s_lshl_b32 s{S_T0}, s{S_G}, 3")
    a(f"v_xor_b32 v{T + 2}, s{S_T0}, v{T + 2}")
    a(f"v_lshlrev_b32 v{T + 2}, 4, v{T + 2}")
    pi = 0
    for nt in range(2):
        for j in range(4):
            a(f"v_xor_b32 v{T + 3}, {(nt * 4 + j) << 4}, v{T + 2}")
            a(f"v_add_u32 v{T + 4}, v{T + 3}, v{T + 5}")
            a(f"v_add_u32 v{T + 3}, v{T + 3}, v{T + 1}")
            for mt in range(2):
                r = qc.acc(nt, mt) + 4 * j
                pp = V_S + 2 * (pi % 8)
                pi += 1
                for q in range(4):
                    a(f"v_mul_f32 v{r + q}, s{S_T1}, v{r + q}")
                a(f"v_cvt_pk_bf16_f32 v{pp}, v{r}, v{r + 1}")
                a(f"v_cvt_pk_bf16_f32 v{pp + 1}, v{r + 2}, v{r + 3}")
                a(f"ds_write_b64 v{T + 3 + mt}, {vr(pp, 2)}")
    a("s_waitcnt lgkmcnt(0)")
    a("s_barrier")
    q_frag_reads(0)
    a("s_load_dwordx2 s[66:67], s[0:1], 40")
    a("s_load_dwordx4 s[68:71], s[0:1], 56")
    a("s_load_dwordx2 s[72:73], s[0:1], 72")
    a(f"s_lshl_b32 s{S_T0}, s2, 3")
    a(f"s_add_u32 s{S_T0}, s{S_T0}, s{S_WAVE}")
    a(f"s_lshl_b32 s74, s{S_T0}, 11")
    a(f"s_lshl_b32 s75, s{S_T0}, 10")
    a("s_waitcnt lgkmcnt(0)")
    a(f"s_mul_i32 s{S_T0}, s{S_WQ}, 8704")
    a(f"s_add_u32 s{S_T0}, s{S_T0}, 16384")
    a(f"s_lshl_b32 s{S_T1}, s{S_G}, 16")
    a(f"s_add_u32 s{S_XO}, s{S_T0}, s{S_T1}")
    a(f"s_xor_b32 s{S_XP}, s{S_XO}, 65536")
    a("s_waitcnt vmcnt(0) lgkmcnt(0)")
    phase = a.uid("phase")
    a.label(phase)
    for r in range(16):
        a(f"v_mov_b32 v{V_NM + r}, 0")
    a(f"v_mov_b32 v{V_M}, 0")
    a(f"v_mov_b32 v{V_L}, 0")
    a(f"s_add_u32 s{S_N}, s{S_QB}, 1")
    a(f"s_mov_b32 s{S_I}, 0")
    iter_head(0, 4)
    iteration(0, True, False, True)
    loop = a.uid("aloop")
    tail0 = a.uid("tail0")
    tail1 = a.uid("tail1")
    tail1f = a.uid("tail1f")
    mid = a.uid("amid")
    done = a.uid("adone")
    a(f"s_cmp_ge_u32 s{S_I}, s{S_N}")
    a(f"s_cbranch_scc1 {tail1f}")
    iteration(1, True, True, True, first_pv=True)
    a(f"s_branch {mid}")
    a.label(loop)
    a(f"s_cmp_ge_u32 s{S_I}, s{S_N}")
    a(f"s_cbranch_scc1 {tail1}")
    iteration(1, True, True, True)
    a.label(mid)
    a(f"s_cmp_ge_u32 s{S_I}, s{S_N}")
    a(f"s_cbranch_scc1 {tail0}")
    iteration(0, True, True, True)
    a(f"s_branch {loop}")
    a.label(tail1f)
    iteration(1, False, True, False, next_phase_hook, first_pv=True)
    a(f"s_branch {done}")
    a.label(tail1)
    iteration(1, False, True, False, next_phase_hook)
    a(f"s_branch {done}")
    a.label(tail0)
    iteration(0, False, True, False, next_phase_hook)
    a.label(done)

    V_F = V_KF
    stamp()
    stamp(True)
    a("s_barrier")
    a(f"v_mov_b32 v{T}, v{V_L}")
    a("s_nop 1")
    a(f"v_permlane32_swap_b32 v{T}, v{V_L}")
    a(f"v_add_f32 v{V_L}, v{V_L}, v{T}")
    a(f"v_lshlrev_b32 v{T}, 4, v{L}")
    a(f"v_add_u32 v{T + 1}, s{S_XO}, v{T}")
    a(f"v_add_u32 v{T + 2}, s{S_XP}, v{T}")
    a(f"v_lshlrev_b32 v{T}, 2, v{L}")
    a(f"v_add_u32 v{T + 3}, s{S_XO}, v{T}")
    a(f"v_add_u32 v{T + 4}, s{S_XP}, v{T}")
    a(f"v_and_b32 v{T + 7}, 31, v{L}")
    a(f"v_mul_u32_u24 v{T + 7}, {CTX_LD}, v{T + 7}")
    a(f"v_lshrrev_b32 v{T + 8}, 5, v{L}")
    a(f"v_lshl_add_u32 v{T + 8}, v{T + 8}, 4, v{T + 7}")
    a(f"s_lshl_b32 s{S_T0}, s{S_QB}, 7")
    a(f"s_lshl_b32 s{S_T1}, s{S_WQ}, 5")
    a(f"s_add_u32 s{S_T0}, s{S_T0}, s{S_T1}")
    a(f"s_mul_i32 s{S_T0}, s{S_T0}, {CTX_LD}")
    a(f"s_add_u32 s{S_T0}, s{S_T0}, s22")
    a(f"s_lshl_b32 s{S_T1}, s{S_G}, 7")
    a(f"s_add_u32 s65, s{S_T0}, s{S_T1}")

    def merge(g):
        keep = V_O + 32 * g
        send = V_O + 32 * (1 - g)
        for t in range(8):
            a(f"ds_write_b128 v{T + 1}, {vr(send + 4 * t, 4)} offset:{t * 1024}")
        a(f"ds_write_b32 v{T + 3}, v{V_M} offset:8192")
        a(f"ds_write_b32 v{T + 3}, v{V_L} offset:8448")
        a("s_waitcnt lgkmcnt(0)")
        a("s_barrier")
        a(f"ds_read_b32 v{T + 5}, v{T + 4} offset:8192")
        a(f"ds_read_b32 v{T + 6}, v{T + 4} offset:8448")
        for t in range(8):
            a(f"ds_read_b128 {vr(V_F + 4 * t, 4)}, v{T + 2} offset:{t * 1024}")
        a("s_waitcnt lgkmcnt(8)")
        a(f"v_max_f32 v{T}, v{V_M}, v{T + 5}")
        a(f"v_sub_f32 v{T + 1}, v{V_M}, v{T}")
        a(f"v_sub_f32 v{T + 2}, v{T + 5}, v{T}")
        a(f"v_exp_f32 v{T + 1}, v{T + 1}")
        a(f"v_exp_f32 v{T + 2}, v{T + 2}")
        a("s_nop 0")
        a(f"v_mul_f32 v{T + 3}, v{T + 1}, v{V_L}")
        a(f"v_fmac_f32 v{T + 3}, v{T + 2}, v{T + 6}")
        a(f"v_rcp_f32 v{T + 3}, v{T + 3}")
        a("s_nop 0")
        a(f"v_mul_f32 v{T + 1}, v{T + 1}, v{T + 3}")
        a(f"v_mul_f32 v{T + 2}, v{T + 2}, v{T + 3}")
        if "a_direct" in FLAGS:
            for pr in range(4):
                a(f"s_waitcnt lgkmcnt({6 - 2 * pr})")
                for r in range(8 * pr, 8 * pr + 8):
                    a(f"v_mul_f32 v{keep + r}, v{keep + r}, v{T + 1}")
                    a(f"v_fmac_f32 v{keep + r}, v{V_F + r}, v{T + 2}")
                P = V_S + 4 * pr
                for q in range(4):
                    a(f"v_cvt_pk_bf16_f32 v{P + q}, v{keep + 8 * pr + 2 * q}, v{keep + 8 * pr + 2 * q + 1}")
                a("s_nop 1")
                a(f"v_permlane32_swap_b32 v{P}, v{P + 2}")
                a(f"v_permlane32_swap_b32 v{P + 1}, v{P + 3}")
                a(f"buffer_store_dwordx4 {vr(P, 4)}, v{T + 8}, s[16:19], s65 offen offset:{32 * pr}")
            return
        for pr in range(4):
            a(f"s_waitcnt lgkmcnt({6 - 2 * pr})")
            for r in range(8 * pr, 8 * pr + 8):
                a(f"v_mul_f32 v{keep + r}, v{keep + r}, v{T + 1}")
                a(f"v_fmac_f32 v{keep + r}, v{V_F + r}, v{T + 2}")
        a("s_barrier")
        c = Shim()
        c.v_lane, c.v_t, c.TM, c.MT = L, T, 32, 1
        pool = [V_S + 32 + 2 * i for i in range(8)]
        st = {"i": 0}

        def src(nb, mt, j):
            p = pool[st["i"] % len(pool)]
            st["i"] += 1
            r = keep + 16 * nb + 4 * j
            a(f"v_cvt_pk_bf16_f32 v{p}, v{r}, v{r + 1}")
            a(f"v_cvt_pk_bf16_f32 v{p + 1}, v{r + 2}, v{r + 3}")
            return p
        RBo, region = epilogue_to_lds(a, c, 2, src, S_XO)
        nad, rpi = epilogue_read_addrs(a, c, RBo, region, V_S, S_XO)
        a(f"v_lshrrev_b32 v{T}, 3, v{L}")
        a(f"v_mul_u32_u24 v{T}, {CTX_LD}, v{T}")
        a(f"v_and_b32 v{T + 1}, 7, v{L}")
        a(f"v_lshl_add_u32 v{T + 8}, v{T + 1}, 4, v{T}")
        a("s_waitcnt lgkmcnt(0)")
        for i in range(4):
            a(f"ds_read_b128 {vr(V_F + 4 * i, 4)}, v{V_S + (i % nad)} offset:{i * rpi * RBo}")
        for i in range(4):
            a(f"s_waitcnt lgkmcnt({3 - i})")
            a(f"s_add_u32 s{S_T1}, s65, {i * 8 * CTX_LD}")
            a(f"buffer_store_dwordx4 {vr(V_F + 4 * i, 4)}, v{T + 8}, s[16:19], s{S_T1} offen")

    g1 = a.uid("g1")
    gj = a.uid("gj")
    a(f"s_cmp_eq_u32 s{S_G}, 1")
    a(f"s_cbranch_scc1 {g1}")
    merge(0)
    a(f"s_branch {gj}")
    a.label(g1)
    merge(1)
    a.label(gj)
    a(f"s_add_u32 s{S_PH}, s{S_PH}, 1")
    a(f"s_mov_b32 s{S_QB}, s23")
    a(f"s_cmp_lt_u32 s{S_PH}, 2")
    a(f"s_cbranch_scc1 {phase}")
    wgstamp(1)
    if "k_stamp" in FLAGS:
        a("s_waitcnt vmcnt(0)")
    kstamp(a, 1)
    a.label(end)
    a("s_endpgm")
    return name, V_END, 163840
```

```python
import sys, os
sys.path.insert(0, "dev")
from asmlib import *
from gemm import *
if os.environ.get("ATTN", "5") == "4":
    from attn4 import gen_attn_kernel
else:
    from attn5 import gen_attn_kernel

import os
FLAGS = set(os.environ.get("GENFLAGS", "").split(","))
MB = 1 << 20
WS_XN = 0 * MB
WS_H = 2 * MB
WS_HN = 4 * MB
WS_Q = 16 * MB
WS_K = 32 * MB
WS_V = 48 * MB
WS_CTX = 64 * MB
CTX_LD = int(os.environ.get("CTX_LD", "8192"))
WS_PART = 84 * MB
WS_HH = 100 * MB

KA_X, KA_CKV, KA_WQ, KA_WUK, KA_WUV, KA_WO, KA_BX, KA_WG, KA_WU, KA_WD, KA_OUT, KA_DBG, KA_WS = [8 * i for i in range(13)]


def ln_row(a, vin, vt, s0, out_regs):
    f = vt
    acc = vt + 8
    tmp = vt + 9
    mean = vt + 10
    sd = vt + 11
    for i in range(4):
        a(f"v_lshlrev_b32 v{f + 2 * i}, 16, v{vin + i}")
        a(f"v_and_b32 v{f + 2 * i + 1}, 0xffff0000, v{vin + i}")
    a(f"v_add_f32 v{acc}, v{f}, v{f + 1}")
    for i in range(2, 8):
        a(f"v_add_f32 v{acc}, v{acc}, v{f + i}")
    wave_sum(a, acc, tmp, s0)
    a(f"v_mul_f32 v{mean}, 0x3b000000, v{acc}")
    a(f"v_sub_f32 v{tmp}, v{f}, v{mean}")
    a(f"v_mul_f32 v{acc}, v{tmp}, v{tmp}")
    for i in range(1, 8):
        a(f"v_sub_f32 v{tmp}, v{f + i}, v{mean}")
        a(f"v_fmac_f32 v{acc}, v{tmp}, v{tmp}")
    wave_sum(a, acc, tmp, s0)
    a(f"v_mul_f32 v{acc}, 0x3b000000, v{acc}")
    a(f"v_cvt_pk_bf16_f32 v{tmp}, v{mean}, v{acc}")
    a(f"v_lshlrev_b32 v{mean}, 16, v{tmp}")
    a(f"v_and_b32 v{acc}, 0xffff0000, v{tmp}")
    a(f"v_add_f32 v{acc}, 0x3727c5ac, v{acc}")
    a(f"v_cvt_pk_bf16_f32 v{tmp}, v{acc}, v{acc}")
    a(f"v_lshlrev_b32 v{acc}, 16, v{tmp}")
    a(f"v_sqrt_f32 v{acc}, v{acc}")
    a("s_nop 0")
    a(f"v_cvt_pk_bf16_f32 v{tmp}, v{acc}, v{acc}")
    a(f"v_lshlrev_b32 v{acc}, 16, v{tmp}")
    a(f"v_rcp_f32 v{sd}, v{acc}")
    for i in range(8):
        a(f"v_sub_f32 v{f + i}, v{f + i}, v{mean}")
    for i in range(4):
        a(f"v_cvt_pk_bf16_f32 v{tmp}, v{f + 2 * i}, v{f + 2 * i + 1}")
        a(f"v_lshlrev_b32 v{f + 2 * i}, 16, v{tmp}")
        a(f"v_and_b32 v{f + 2 * i + 1}, 0xffff0000, v{tmp}")
    for i in range(8):
        a(f"v_mul_f32 v{f + i}, v{f + i}, v{sd}")
    for i in range(4):
        a(f"v_cvt_pk_bf16_f32 v{out_regs + i}, v{f + 2 * i}, v{f + 2 * i + 1}")


def plain_pack(a, c, pool, s_scale=None):
    state = {"i": 0}

    def fn(nb, mt, j):
        p = pool[state["i"] % len(pool)]
        state["i"] += 1
        r = c.acc(nb, mt) + 4 * j
        if s_scale is not None:
            for q in range(4):
                a(f"v_mul_f32 v{r + q}, s{s_scale}, v{r + q}")
        a(f"v_cvt_pk_bf16_f32 v{p}, v{r}, v{r + 1}")
        a(f"v_cvt_pk_bf16_f32 v{p + 1}, v{r + 2}, v{r + 3}")
        return p
    return fn


def head_store_epilogue(a, c, srd_out, s_rowbase_bytes, s_scale=None):
    a("s_barrier")
    pool = [c.v_A + 2 * i for i in range(c.NT * 4)]
    RBo, region = epilogue_to_lds(a, c, c.NT, plain_pack(a, c, pool, s_scale))
    nad, rpi = epilogue_read_addrs(a, c, RBo, region, c.v_va)
    L = c.v_lane
    t = c.v_t
    cpr = RBo // 16
    lg = cpr.bit_length() - 1
    a(f"v_lshrrev_b32 v{t}, {lg}, v{L}")
    a(f"v_lshlrev_b32 v{t}, 8, v{t}")
    a(f"v_and_b32 v{t + 1}, {cpr - 1}, v{L}")
    a(f"v_lshl_add_u32 v{c.v_x}, v{t + 1}, 4, v{t}")
    a("s_waitcnt lgkmcnt(0)")
    nins = c.TM // rpi
    for i in range(nins):
        a(f"ds_read_b128 {vr(c.v_acc + 4 * i, 4)}, v{c.v_va + (i % nad)} offset:{i * rpi * RBo}")
    for i in range(nins):
        a(f"s_waitcnt lgkmcnt({min(15, nins - 1 - i)})")
        a(f"s_add_u32 s{S_T0}, s{s_rowbase_bytes}, {i * rpi * 256}")
        if "nostore" not in FLAGS:
            a(f"buffer_store_dwordx4 {vr(c.v_acc + 4 * i, 4)}, v{c.v_x}, s[{srd_out}:{srd_out + 3}], s{S_T0} offen")


def gen_kv_kernel(a):
    name = "kv_kernel"
    c = GemmCfg(BM=256, BN=256, WM=4, WN=2, K=512, lda=1024, ldb=8192, BK=int(os.environ.get("KVBK", "64")), NS=int(os.environ.get("KVNS", "2")))
    kernel_header(a, name)
    end = a.uid("end")
    a("s_cmp_ge_u32 s2, 256")
    a(f"s_cbranch_scc1 {end}")
    a(f"s_load_dwordx4 s[36:39], s[0:1], {KA_X}")
    a(f"s_load_dwordx4 s[40:43], s[0:1], {KA_WUK}")
    a(f"s_load_dwordx2 s[44:45], s[0:1], {KA_WS}")
    if "loc_kv" in FLAGS:
        a("s_and_b32 s46, s2, 7")
        a("s_lshl_b32 s46, s46, 1")
        a("s_bfe_u32 s47, s2, 0x10003")
        a("s_add_u32 s46, s46, s47")
        a("s_bfe_u32 s47, s2, 0x10004")
        a("s_lshl_b32 s47, s47, 4")
        a("s_add_u32 s46, s46, s47")
    else:
        a("s_and_b32 s46, s2, 7")
        a("s_lshl_b32 s46, s46, 2")
        a("s_bfe_u32 s47, s2, 0x20003")
        a("s_add_u32 s46, s46, s47")
    a("s_lshr_b32 s47, s2, 5")
    a("s_lshl_b32 s47, s47, 8")
    a("s_and_b32 s48, s46, 15")
    a("s_lshl_b32 s48, s48, 8")
    a("s_waitcnt lgkmcnt(0)")
    make_srd(a, S_SRD_X, 38, 0, 2 * MB)
    a("s_cmp_lt_u32 s46, 16")
    a("s_cselect_b32 s8, s40, s42")
    a("s_cselect_b32 s9, s41, s43")
    a(f"s_mov_b32 s10, {4 * MB}")
    a("s_mov_b32 s11, 0x00020000")
    a(f"s_mov_b32 s50, {WS_V}")
    a(f"s_cselect_b32 s49, {WS_K}, s50")
    a("s_add_u32 s16, s44, s49")
    a("s_addc_u32 s17, s45, 0")
    a(f"s_mov_b32 s18, {16 * MB}")
    a("s_mov_b32 s19, 0x00020000")
    gemm_setup(a, c, 47, [48])
    gemm_dma_prologue(a, c)
    make_srd(a, 52, 36, 0, 2 * MB)
    make_srd(a, 56, 44, WS_XN, 2 * MB)
    a("s_lshl_b32 s53_, s2, 3".replace("s53_", "s60"))
    a(f"s_add_u32 s60, s60, s{S_WAVE}")
    a("s_lshl_b32 s60, s60, 10")
    vx = c.v_end
    a(f"v_lshlrev_b32 v{vx + 4}, 4, v{c.v_lane}")
    a(f"buffer_load_dwordx4 {vr(vx, 4)}, v{vx + 4}, s[52:55], s60 offen")
    gemm_read_addrs(a, c)
    la = Asm()
    ln_row(la, vx, vx + 8, 64, vx + 24)
    la(f"buffer_store_dwordx4 {vr(vx + 24, 4)}, v{vx + 4}, s[56:59], s60 offen")
    lines = [l.strip() for l in la.lines]
    fill = [lines[i:i + 3] for i in range(0, len(lines), 3)]
    gemm_mainloop(a, c, fill=fill)
    a("s_lshr_b32 s50, s48, 7")
    a(f"s_add_u32 s50, s50, s{S_WN}")
    a("s_lshl_b32 s50, s50, 19")
    a(f"s_mul_i32 s51, s{S_WM}, {c.TM}")
    a("s_add_u32 s51, s51, s47")
    a("s_lshl_b32 s51, s51, 8")
    a("s_add_u32 s50, s50, s51")
    if "a_nopf" not in FLAGS:
        a(f"s_load_dwordx2 s[68:69], s[0:1], {KA_WQ}")
        a("s_lshl_b32 s70, s60, 1")
        a("s_waitcnt lgkmcnt(0)")
        make_srd(a, 72, 68, 0, 4 * MB)
    head_store_epilogue(a, c, 16, 50)
    vt = c.v_A
    if "a_nopf" not in FLAGS:
        a(f"buffer_load_dwordx4 {vr(c.v_B, 4)}, v{vx + 4}, s[72:75], s70 offen")
        a(f"buffer_load_dwordx4 {vr(c.v_B + 4, 4)}, v{vx + 4}, s[72:75], s70 offen offset:1024")
    gstamp(a, c)
    if "g_stamp" in FLAGS:
        a("s_waitcnt vmcnt(0)")
    gstamp(a, c)
    if "k_stamp" in FLAGS:
        a("s_waitcnt vmcnt(0)")
    kstamp(a, 1)
    a.label(end)
    a("s_endpgm")
    return name, c.v_end + 28, c.lds_bytes()


def gen_q_kernel(a):
    name = "q_kernel"
    c = GemmCfg(BM=128, BN=256, WM=2, WN=4, K=512, lda=1024, ldb=8192, NS=3)
    kernel_header(a, name)
    end = a.uid("end")
    a("s_cmp_ge_u32 s2, 256")
    a(f"s_cbranch_scc1 {end}")
    a(f"s_load_dwordx2 s[40:41], s[0:1], {KA_WQ}")
    a(f"s_load_dwordx2 s[44:45], s[0:1], {KA_WS}")
    a("s_and_b32 s46, s2, 7")
    a("s_lshl_b32 s46, s46, 1")
    a("s_bfe_u32 s47, s2, 0x10003")
    a("s_add_u32 s46, s46, s47")
    a("s_lshr_b32 s47, s2, 4")
    a("s_lshl_b32 s47, s47, 7")
    a("s_lshl_b32 s48, s46, 8")
    a("s_waitcnt lgkmcnt(0)")
    make_srd(a, S_SRD_X, 44, WS_XN, 2 * MB)
    make_srd(a, S_SRD_W, 40, 0, 4 * MB)
    make_srd(a, 16, 44, WS_Q, 16 * MB)
    gemm_setup(a, c, 47, [48])
    gemm_dma_prologue(a, c)
    gemm_read_addrs(a, c)
    gemm_mainloop(a, c)
    a(f"s_lshl_b32 s50, s{S_WN}, 6")
    a("s_add_u32 s50, s50, s48")
    a("s_lshr_b32 s51, s50, 7")
    a("s_lshl_b32 s51, s51, 19")
    a("s_and_b32 s50, s50, 127")
    a("s_lshl_b32 s50, s50, 1")
    a("s_add_u32 s50, s50, s51")
    a(f"s_mul_i32 s51, s{S_WM}, {c.TM}")
    a("s_add_u32 s51, s51, s47")
    a("s_lshl_b32 s51, s51, 8")
    a("s_add_u32 s50, s50, s51")
    a("s_mov_b32 s52, 0x3e0293ee")
    head_store_epilogue(a, c, 16, 50, 52)
    gstamp(a, c)
    if "g_stamp" in FLAGS:
        a("s_waitcnt vmcnt(0)")
    gstamp(a, c)
    if "k_stamp" in FLAGS:
        a("s_waitcnt vmcnt(0)")
    kstamp(a, 1)
    a.label(end)
    a("s_endpgm")
    return name, c.v_end, c.lds_bytes()


def gen_oproj_kernel(a):
    name = "oproj_kernel"
    c = GemmCfg(BM=128, BN=128, WM=2, WN=4, K=1024, lda=CTX_LD, ldb=1024, NS=int(os.environ.get("ONS", "5")), BK=int(os.environ.get("OBK", "64")))
    kernel_header(a, name)
    end = a.uid("end")
    a("s_cmp_ge_u32 s2, 256")
    a(f"s_cbranch_scc1 {end}")
    a(f"s_load_dwordx2 s[40:41], s[0:1], {KA_WO}")
    a(f"s_load_dwordx2 s[44:45], s[0:1], {KA_WS}")
    if "oldmap" in FLAGS:
        a("s_and_b32 s46, s2, 7")
        a("s_lshl_b32 s46, s46, 1")
        a("s_bfe_u32 s47, s2, 0x10003")
        a("s_add_u32 s46, s46, s47")
        a("s_lshl_b32 s47, s46, 7")
        a("s_bfe_u32 s48, s2, 0x20004")
        a("s_lshl_b32 s48, s48, 7")
        a("s_lshr_b32 s49, s2, 6")
    else:
        if "loc_o" in FLAGS:
            a("s_bfe_u32 s49, s2, 0x20001")
            a("s_and_b32 s46, s2, 1")
        else:
            a("s_and_b32 s49, s2, 3")
            a("s_bfe_u32 s46, s2, 0x10002")
        a("s_lshl_b32 s46, s46, 3")
        a("s_lshr_b32 s47, s2, 5")
        a("s_add_u32 s46, s46, s47")
        a("s_lshl_b32 s47, s46, 7")
        a("s_bfe_u32 s48, s2, 0x20003")
        a("s_lshl_b32 s48, s48, 7")
    a("s_lshl_b32 s50, s49, 10")
    a("s_waitcnt lgkmcnt(0)")
    make_srd(a, S_SRD_X, 44, WS_CTX, 2048 * CTX_LD)
    make_srd(a, S_SRD_W, 40, 0, 4 * MB)
    make_srd(a, 16, 44, WS_PART, 8 * MB)
    gemm_setup(a, c, 47, [48], 50)
    gemm_dma_prologue(a, c)
    gemm_read_addrs(a, c)
    gemm_mainloop(a, c)
    a("s_lshl_b32 s50, s49, 21")
    a(f"s_mul_i32 s51, s{S_WM}, {c.TM}")
    a("s_add_u32 s51, s51, s47")
    a("s_lshl_b32 s51, s51, 10")
    a("s_add_u32 s50, s50, s51")
    a(f"s_lshl_b32 s51, s{S_WN}, 5")
    a("s_add_u32 s51, s51, s48")
    a("s_lshl_b32 s51, s51, 1")
    a("s_add_u32 s50, s50, s51")
    pool = [c.v_A + 2 * i for i in range(4)]
    rowmajor_store(a, c, 1, plain_pack(a, c, pool), 16, 50, 1024)
    gstamp(a, c)
    if "g_stamp" in FLAGS:
        a("s_waitcnt vmcnt(0)")
    gstamp(a, c)
    if "k_stamp" in FLAGS:
        a("s_waitcnt vmcnt(0)")
    kstamp(a, 1)
    a.label(end)
    a("s_endpgm")
    return name, c.v_end, c.lds_bytes()


def gen_redln_kernel(a):
    name = "redln_kernel"
    kernel_header(a, name)
    end = a.uid("end")
    a("s_cmp_ge_u32 s2, 512")
    a(f"s_cbranch_scc1 {end}")
    a(f"s_load_dwordx2 s[36:37], s[0:1], {KA_X}")
    a(f"s_load_dwordx2 s[44:45], s[0:1], {KA_WS}")
    a("v_and_b32 v1, 63, v0")
    a("v_lshrrev_b32 v2, 6, v0")
    a("s_nop 0")
    a("v_readfirstlane_b32 s24, v2")
    a("s_nop 3")
    if "loc_r" in FLAGS:
        a("s_and_b32 s25, s2, 3")
        a("s_lshl_b32 s25, s25, 7")
        a("s_bfe_u32 s26, s2, 0x10002")
        a("s_lshl_b32 s26, s26, 6")
        a("s_add_u32 s25, s25, s26")
        a("s_lshr_b32 s26, s2, 3")
        a("s_add_u32 s25, s25, s26")
        a("s_lshl_b32 s25, s25, 2")
    else:
        a("s_lshl_b32 s25, s2, 2")
    a("s_add_u32 s25, s25, s24")
    a("s_lshl_b32 s26, s25, 10")
    a("s_lshl_b32 s27, s25, 11")
    a("s_waitcnt lgkmcnt(0)")
    make_srd(a, 4, 36, 0, 2 * MB)
    make_srd(a, 8, 44, WS_PART, 8 * MB)
    make_srd(a, 12, 44, WS_H, 2 * MB)
    make_srd(a, 16, 44, WS_HN, 2 * MB)
    a("v_lshlrev_b32 v3, 4, v1")
    a("buffer_load_dwordx4 v[8:11], v3, s[4:7], s26 offen")
    for ks in range(4):
        a(f"s_add_u32 s28, s26, {ks * 2 * MB}")
        a(f"buffer_load_dwordx4 {vr(32 + 4 * ks, 4)}, v3, s[8:11], s28 offen")
    a("s_waitcnt vmcnt(0)")
    for i in range(4):
        a(f"v_lshlrev_b32 v{16 + 2 * i}, 16, v{32 + i}")
        a(f"v_and_b32 v{17 + 2 * i}, 0xffff0000, v{32 + i}")
    for ks in range(1, 4):
        for i in range(4):
            a(f"v_lshlrev_b32 v{24 + 2 * i}, 16, v{32 + 4 * ks + i}")
            a(f"v_and_b32 v{25 + 2 * i}, 0xffff0000, v{32 + 4 * ks + i}")
        for i in range(8):
            a(f"v_add_f32 v{16 + i}, v{16 + i}, v{24 + i}")
    for i in range(4):
        a(f"v_cvt_pk_bf16_f32 v{24 + i}, v{16 + 2 * i}, v{17 + 2 * i}")
    for i in range(4):
        a(f"v_lshlrev_b32 v{16 + 2 * i}, 16, v{24 + i}")
        a(f"v_and_b32 v{17 + 2 * i}, 0xffff0000, v{24 + i}")
        a(f"v_lshlrev_b32 v{32 + 2 * i}, 16, v{8 + i}")
        a(f"v_and_b32 v{33 + 2 * i}, 0xffff0000, v{8 + i}")
    for i in range(8):
        a(f"v_add_f32 v{16 + i}, v{16 + i}, v{32 + i}")
    for i in range(4):
        a(f"v_cvt_pk_bf16_f32 v{8 + i}, v{16 + 2 * i}, v{17 + 2 * i}")
    a("buffer_store_dwordx4 v[8:11], v3, s[12:15], s26 offen")
    ln_row(a, 8, 16, 60, 40)
    a("buffer_store_dwordx4 v[40:43], v3, s[16:19], s26 offen")
    if "k_stamp" in FLAGS:
        a("s_waitcnt vmcnt(0)")
    kstamp(a, 1)
    a.label(end)
    a("s_endpgm")
    return name, 48, 0


def rowmajor_store(a, c, nblocks, src_fn, srd_out, s_base, ld_out, resid=None):
    a("s_barrier")
    RBo, region = epilogue_to_lds(a, c, nblocks, src_fn)
    nad, rpi = epilogue_read_addrs(a, c, RBo, region, c.v_va)
    L, t = c.v_lane, c.v_t
    cpr = RBo // 16
    lg = cpr.bit_length() - 1
    a(f"v_lshrrev_b32 v{t}, {lg}, v{L}")
    a(f"s_mov_b32 s{S_T0}, {ld_out}")
    a(f"v_mul_lo_u32 v{t}, v{t}, s{S_T0}")
    a(f"v_and_b32 v{t + 1}, {cpr - 1}, v{L}")
    a(f"v_lshl_add_u32 v{c.v_x}, v{t + 1}, 4, v{t}")
    nins = c.TM // rpi
    R = c.v_acc
    if resid is not None:
        for i in range(nins):
            a(f"s_add_u32 s{S_T0}, s{s_base}, {i * rpi * ld_out}")
            a(f"buffer_load_dwordx4 {vr(R + 4 * nins + 4 * i, 4)}, v{c.v_x}, s[{resid}:{resid + 3}], s{S_T0} offen")
    a("s_waitcnt lgkmcnt(0)")
    for i in range(nins):
        a(f"ds_read_b128 {vr(R + 4 * i, 4)}, v{c.v_va + (i % nad)} offset:{i * rpi * RBo}")
    if resid is not None:
        a("s_waitcnt vmcnt(0) lgkmcnt(0)")
        for i in range(nins):
            for q in range(4):
                x0 = R + 4 * i + q
                y0 = R + 4 * nins + 4 * i + q
                a(f"v_lshlrev_b32 v{t}, 16, v{x0}")
                a(f"v_and_b32 v{t + 1}, 0xffff0000, v{x0}")
                a(f"v_lshlrev_b32 v{t + 2}, 16, v{y0}")
                a(f"v_and_b32 v{t + 3}, 0xffff0000, v{y0}")
                a(f"v_add_f32 v{t}, v{t}, v{t + 2}")
                a(f"v_add_f32 v{t + 1}, v{t + 1}, v{t + 3}")
                a(f"v_cvt_pk_bf16_f32 v{x0}, v{t}, v{t + 1}")
    for i in range(nins):
        if resid is None:
            a(f"s_waitcnt lgkmcnt({min(15, nins - 1 - i)})")
        a(f"s_add_u32 s{S_T0}, s{s_base}, {i * rpi * ld_out}")
        a(f"buffer_store_dwordx4 {vr(R + 4 * i, 4)}, v{c.v_x}, s[{srd_out}:{srd_out + 3}], s{S_T0} offen")


def gen_glu_kernel(a):
    name = "glu_kernel"
    c = GemmCfg(BM=128, BN=256, WM=2, WN=4, K=512, lda=1024, ldb=3584, nsub=2, NS=int(os.environ.get("GNS", "3")), BK=int(os.environ.get("GBK", "64")))
    kernel_header(a, name)
    end = a.uid("end")
    a("s_cmp_ge_u32 s2, 224")
    a(f"s_cbranch_scc1 {end}")
    a(f"s_load_dwordx4 s[40:43], s[0:1], {KA_WG}")
    a(f"s_load_dwordx2 s[44:45], s[0:1], {KA_WS}")
    if "oldmap" in FLAGS:
        a("s_and_b32 s47, s2, 15")
        a("s_lshl_b32 s47, s47, 7")
        a("s_lshr_b32 s48, s2, 4")
        a("s_lshl_b32 s48, s48, 7")
    else:
        a("s_and_b32 s47, s2, 3")
        a("s_lshl_b32 s47, s47, 2")
        a("s_bfe_u32 s46, s2, 0x20003")
        a("s_add_u32 s47, s47, s46")
        a("s_lshl_b32 s47, s47, 7")
        a("s_bfe_u32 s48, s2, 0x10002")
        a("s_mul_i32 s48, s48, 7")
        a("s_lshr_b32 s46, s2, 5")
        a("s_add_u32 s48, s48, s46")
        a("s_lshl_b32 s48, s48, 7")
    a("s_waitcnt lgkmcnt(0)")
    make_srd(a, S_SRD_X, 44, WS_HN, 2 * MB)
    make_srd(a, S_SRD_W, 40, 0, 512 * 1792 * 2)
    make_srd(a, S_SRD_W + 4, 42, 0, 512 * 1792 * 2)
    make_srd(a, 16, 44, WS_HH, 2048 * 1792 * 2)
    gemm_setup(a, c, 47, [48, 48])
    gemm_dma_prologue(a, c)
    gemm_read_addrs(a, c)
    gemm_mainloop(a, c)
    a(f"s_mul_i32 s50, s{S_WM}, {c.TM}")
    a("s_add_u32 s50, s50, s47")
    a("s_mul_i32 s50, s50, 3584")
    a(f"s_lshl_b32 s51, s{S_WN}, 5")
    a("s_add_u32 s51, s51, s48")
    a("s_lshl_b32 s51, s51, 1")
    a("s_add_u32 s50, s50, s51")
    a(f"s_mov_b32 s52, 0xbfb8aa3b")
    pool = [c.v_A + 2 * i for i in range(4)]
    tmp = c.v_A + 8
    st = {"i": 0}

    def src(nb, mt, j):
        p = pool[st["i"] % len(pool)]
        st["i"] += 1
        g = c.acc(0, mt) + 4 * j
        u = c.acc(1, mt) + 4 * j
        for half in range(2):
            g0, g1, u0, u1 = g + 2 * half, g + 2 * half + 1, u + 2 * half, u + 2 * half + 1
            a(f"v_cvt_pk_bf16_f32 v{tmp}, v{g0}, v{g1}")
            a(f"v_cvt_pk_bf16_f32 v{tmp + 1}, v{u0}, v{u1}")
            a(f"v_lshlrev_b32 v{g0}, 16, v{tmp}")
            a(f"v_and_b32 v{g1}, 0xffff0000, v{tmp}")
            a(f"v_mul_f32 v{g0}, s52, v{g0}")
            a(f"v_mul_f32 v{g1}, s52, v{g1}")
            a(f"v_exp_f32 v{g0}, v{g0}")
            a(f"v_exp_f32 v{g1}, v{g1}")
            a(f"v_lshlrev_b32 v{u0}, 16, v{tmp + 1}")
            a(f"v_and_b32 v{u1}, 0xffff0000, v{tmp + 1}")
            a(f"v_add_f32 v{g0}, 1.0, v{g0}")
            a(f"v_add_f32 v{g1}, 1.0, v{g1}")
            a(f"v_rcp_f32 v{g0}, v{g0}")
            a(f"v_rcp_f32 v{g1}, v{g1}")
            a("s_nop 0")
            a(f"v_cvt_pk_bf16_f32 v{tmp}, v{g0}, v{g1}")
            a(f"v_lshlrev_b32 v{g0}, 16, v{tmp}")
            a(f"v_and_b32 v{g1}, 0xffff0000, v{tmp}")
            a(f"v_mul_f32 v{g0}, v{g0}, v{u0}")
            a(f"v_mul_f32 v{g1}, v{g1}, v{u1}")
            a(f"v_cvt_pk_bf16_f32 v{p + half}, v{g0}, v{g1}")
        return p
    rowmajor_store(a, c, 1, src, 16, 50, 3584)
    gstamp(a, c)
    if "g_stamp" in FLAGS:
        a("s_waitcnt vmcnt(0)")
    gstamp(a, c)
    if "k_stamp" in FLAGS:
        a("s_waitcnt vmcnt(0)")
    kstamp(a, 1)
    a.label(end)
    a("s_endpgm")
    return name, c.v_end, c.lds_bytes()


def gen_down_kernel(a):
    name = "down_kernel"
    c = GemmCfg(BM=64, BN=64, WM=2, WN=2, K=1792, lda=3584, ldb=1024, NS=int(os.environ.get("DNS", "8")))
    kernel_header(a, name)
    end = a.uid("end")
    a("s_cmp_ge_u32 s2, 256")
    a(f"s_cbranch_scc1 {end}")
    a(f"s_load_dwordx4 s[40:43], s[0:1], {KA_WD}")
    a(f"s_load_dwordx2 s[44:45], s[0:1], {KA_WS}")
    if "loc_d" in FLAGS:
        a("s_and_b32 s46, s2, 3")
        a("s_lshl_b32 s46, s46, 3")
        a("s_bfe_u32 s47, s2, 0x10002")
        a("s_lshl_b32 s47, s47, 2")
        a("s_add_u32 s46, s46, s47")
    else:
        a("s_and_b32 s46, s2, 7")
        a("s_lshl_b32 s46, s46, 2")
    a("s_bfe_u32 s47, s2, 0x20003")
    a("s_add_u32 s46, s46, s47")
    a("s_lshl_b32 s47, s46, 6")
    a("s_lshr_b32 s48, s2, 5")
    a("s_lshl_b32 s48, s48, 6")
    a("s_waitcnt lgkmcnt(0)")
    make_srd(a, S_SRD_X, 44, WS_HH, 2048 * 1792 * 2)
    make_srd(a, S_SRD_W, 40, 0, 1792 * 512 * 2)
    make_srd(a, 16, 42, 0, 2 * MB)
    make_srd(a, 20, 44, WS_H, 2 * MB)
    gemm_setup(a, c, 47, [48])
    gemm_dma_prologue(a, c)
    gemm_read_addrs(a, c)
    gemm_mainloop(a, c)
    a(f"s_mul_i32 s50, s{S_WM}, {c.TM}")
    a("s_add_u32 s50, s50, s47")
    a("s_lshl_b32 s50, s50, 10")
    a(f"s_lshl_b32 s51, s{S_WN}, 5")
    a("s_add_u32 s51, s51, s48")
    a("s_lshl_b32 s51, s51, 1")
    a("s_add_u32 s50, s50, s51")
    pool = [c.v_A + 2 * i for i in range(4)]
    rowmajor_store(a, c, 1, plain_pack(a, c, pool), 16, 50, 1024, resid=20)
    gstamp(a, c)
    if "g_stamp" in FLAGS:
        a("s_waitcnt vmcnt(0)")
    gstamp(a, c)
    if "k_stamp" in FLAGS:
        a("s_waitcnt vmcnt(0)")
    kstamp(a, 1)
    a.label(end)
    a("s_endpgm")
    return name, max(c.v_end, c.v_acc + 16), c.lds_bytes()


HEADER = open("sequential_preLN__compressed_kv_cla__glu_gated_glu__prompt.s.ref").read().split("; Override launch")[0]


def build(kernels):
    a = Asm()
    a.raw('.amdgcn_target "amdgcn-amd-amdhsa--gfx950"')
    a.raw(".text")
    infos = []
    for g, grid, block in kernels:
        name, nv, lds = g(a)
        infos.append((name, nv, lds, grid, block))
    a.raw('.section .rodata,"a"')
    for name, nv, lds, grid, block in infos:
        kernel_descriptor(a, name, nv)
    head = HEADER
    pol = os.environ.get("STPOL", "")
    if pol:
        a.lines = [(l + " " + pol) if l.strip().startswith("buffer_store_dwordx4") else l for l in a.lines]
    for name, nv, lds, grid, block in infos:
        head += f"; @launch kernel={name} grid=({grid},1,1) block=({block},1,1) lds={lds}\n"
    return head + a.text()


if __name__ == "__main__":
    ks = [(gen_kv_kernel, 256, 512),
          (lambda a: gen_attn_kernel(a, WS_XN, WS_K, WS_V, WS_CTX, KA_WS, KA_WQ, CTX_LD), 256, 512),
          (gen_oproj_kernel, 256, 512), (gen_redln_kernel, 512, 256), (gen_glu_kernel, 224, 512),
          (gen_down_kernel, 256, 256)]
    out = build(ks)
    dst = sys.argv[1] if len(sys.argv) > 1 else "sequential_preLN__compressed_kv_cla__glu_gated_glu__prompt.s"
    open(dst, "w").write(out)
    print("written", len(out))
```

```python
import os
from asmlib import *
from gemm import (epilogue_to_lds, epilogue_read_addrs, S_WAVE, S_T0, S_T1, GemmCfg, gemm_setup,
                  gemm_dma_prologue, gemm_read_addrs, gemm_mainloop, S_SRD_X, S_SRD_W)

MB = 1 << 20
FLAGS = set(os.environ.get("GENFLAGS", "").split(","))


class Shim:
    pass


class LdsTrack:
    def __init__(self, a):
        self.a = a
        self.q = []
        self.done = -1

    def read(self, text, tag):
        if "a_nolds" not in FLAGS:
            self.a(text)
        self.q.append(tag)

    def wait(self, tag):
        idx = max(i for i, t in enumerate(self.q) if t == tag)
        if idx <= self.done:
            return
        n = len(self.q) - 1 - idx
        n = min(n, 15)
        self.a(f"s_waitcnt lgkmcnt({n})")
        self.done = len(self.q) - 1 - n


def gen_attn_kernel(a, WS_XN, WS_K, WS_V, WS_CTX, KA_WS, KA_WQ, CTX_LD=8192):
    name = "attn_kernel"
    kernel_header(a, name)
    end = a.uid("end")
    L = 1
    T = 2
    V_DK = 12
    V_DV = 13
    V_KA = 14
    V_VA = 22
    V_M = 26
    V_L = 27
    V_AL = 28
    V_MQ = 29
    V_QO = 30
    V_NEG = 31
    V_Q = 32
    V_O = 64
    V_S = 128
    NF = 6
    V_KF = 192
    V_VF = 216
    V_NM = 240
    V_END = 256
    S_G, S_WQ, S_HB, S_QB, S_N, S_KO, S_I, S_C, S_M0, S_PH, S_VO = 34, 35, 36, 37, 38, 39, 40, 41, 42, 43, 52
    S_MASK = 44
    S_XO, S_XP, S_KF = 53, 63, 64

    a("s_cmp_ge_u32 s2, 256")
    a(f"s_cbranch_scc1 {end}")
    a(f"s_load_dwordx2 s[20:21], s[0:1], {KA_WS}")
    a(f"s_load_dwordx2 s[66:67], s[0:1], {KA_WQ}")
    a(f"v_lshrrev_b32 v{T}, 6, v0")
    a("s_nop 0")
    a(f"v_readfirstlane_b32 s{S_WAVE}, v{T}")
    a("s_nop 3")
    a(f"s_lshr_b32 s{S_G}, s{S_WAVE}, 2")
    a(f"s_and_b32 s{S_WQ}, s{S_WAVE}, 3")
    a(f"s_and_b32 s{S_HB}, s2, 7")
    a(f"s_lshl_b32 s{S_HB}, s{S_HB}, 2")
    a(f"s_bfe_u32 s{S_T0}, s2, 0x20003")
    a(f"s_add_u32 s{S_HB}, s{S_HB}, s{S_T0}")
    a(f"s_lshl_b32 s22, s{S_HB}, 8")
    a(f"s_lshl_b32 s68, s{S_HB}, 7")
    a(f"s_lshl_b32 s{S_HB}, s{S_HB}, 19")
    a("s_lshr_b32 s23, s2, 5")
    a(f"s_mov_b32 s{S_C}, 0x41f00000")
    a(f"s_lshl_b32 s{S_M0}, s{S_G}, 16")
    a(f"s_lshl_b32 s{S_T0}, s{S_WQ}, 10")
    a(f"s_add_u32 s{S_M0}, s{S_M0}, s{S_T0}")
    a(f"s_sub_u32 s{S_QB}, 15, s23")
    a(f"s_cmp_eq_u32 s{S_G}, 0")
    a(f"s_cselect_b32 s69, s{S_QB}, s23")
    a("s_lshl_b32 s69, s69, 7")
    a(f"s_lshl_b32 s{S_T0}, s{S_G}, 5")
    a(f"s_sub_u32 s69, s69, s{S_T0}")
    qc = GemmCfg(BM=256, BN=128, WM=4, WN=2, K=512, lda=1024, ldb=8192, NS=3, x_piece_rows=32,
                 vmap=dict(v_x=V_S + 32, v_w=V_S + 33, v_va=V_S + 36, v_vb=V_S + 40, v_A=V_S, v_B=V_S + 16, v_acc=V_O))
    a("s_waitcnt lgkmcnt(0)")
    make_srd(a, S_SRD_X, 20, WS_XN, 2 * MB)
    make_srd(a, S_SRD_W, 66, 0, 4 * MB)
    gemm_setup(a, qc, 69, [68])
    gemm_dma_prologue(a, qc)
    gemm_read_addrs(a, qc)
    a(f"v_lshrrev_b32 v{T}, 4, v{L}")
    a(f"v_and_b32 v{T + 1}, 15, v{L}")
    a(f"s_lshl_b32 s{S_T0}, s{S_WQ}, 2")
    a(f"v_add_u32 v{T + 2}, s{S_T0}, v{T}")
    a(f"v_xor_b32 v{T + 2}, v{T + 2}, v{T + 1}")
    a(f"v_lshlrev_b32 v{T + 2}, 4, v{T + 2}")
    a(f"v_lshl_add_u32 v{V_DK}, v{T}, 8, v{T + 2}")
    a(f"v_lshlrev_b32 v{T + 2}, 2, v{T}")
    a(f"v_xor_b32 v{T + 2}, v{T + 2}, v{T + 1}")
    a(f"v_lshlrev_b32 v{T + 2}, 4, v{T + 2}")
    a(f"v_lshl_add_u32 v{V_DV}, v{T}, 8, v{T + 2}")
    a(f"v_and_b32 v{T}, 31, v{L}")
    a(f"v_and_b32 v{T + 1}, 15, v{L}")
    a(f"v_lshrrev_b32 v{T + 2}, 5, v{L}")
    a(f"v_xor_b32 v{T + 1}, v{T + 1}, v{T + 2}")
    a(f"v_lshlrev_b32 v{T}, 8, v{T}")
    a(f"s_lshl_b32 s{S_T0}, s{S_G}, 16")
    a(f"v_add_u32 v{T}, s{S_T0}, v{T}")
    for s in range(8):
        a(f"v_xor_b32 v{T + 3}, {2 * s}, v{T + 1}")
        a(f"v_lshl_add_u32 v{V_KA + s}, v{T + 3}, 4, v{T}")
    a(f"v_and_b32 v{T}, 15, v{L}")
    a(f"v_lshrrev_b32 v{T + 1}, 2, v{T}")
    a(f"v_and_b32 v{T + 2}, 3, v{T}")
    a(f"v_lshrrev_b32 v{T + 3}, 5, v{L}")
    a(f"v_lshl_add_u32 v{T + 3}, v{T + 3}, 2, v{T + 1}")
    a(f"v_lshlrev_b32 v{T + 3}, 8, v{T + 3}")
    a(f"v_and_b32 v{T + 4}, 1, v{T + 2}")
    a(f"v_lshl_add_u32 v{T + 3}, v{T + 4}, 3, v{T + 3}")
    a(f"v_lshrrev_b32 v{T + 4}, 1, v{T + 2}")
    a(f"v_bfe_u32 v{T + 5}, v{L}, 4, 1")
    a(f"v_lshl_add_u32 v{T + 4}, v{T + 5}, 1, v{T + 4}")
    a(f"v_lshl_add_u32 v{T + 3}, v{T + 4}, 4, v{T + 3}")
    a(f"s_add_u32 s{S_T0}, s{S_T0}, 16384")
    a(f"v_add_u32 v{T + 3}, s{S_T0}, v{T + 3}")
    for db in range(4):
        a(f"v_xor_b32 v{T + 4}, {db}, v{T + 1}")
        a(f"v_lshl_add_u32 v{V_VA + db}, v{T + 4}, 6, v{T + 3}")
    a(f"v_and_b32 v{T}, 31, v{L}")
    a(f"s_lshl_b32 s{S_T0}, s{S_WQ}, 5")
    a(f"s_lshl_b32 s{S_T1}, s{S_G}, 6")
    a(f"s_sub_u32 s{S_T0}, s{S_T0}, s{S_T1}")
    a(f"v_add_u32 v{T}, s{S_T0}, v{T}")
    a(f"v_lshrrev_b32 v{T + 1}, 5, v{L}")
    a(f"v_lshlrev_b32 v{T + 1}, 2, v{T + 1}")
    a(f"v_sub_u32 v{V_MQ}, v{T}, v{T + 1}")
    a(f"v_and_b32 v{T}, 31, v{L}")
    a(f"v_lshrrev_b32 v{T + 1}, 5, v{L}")
    a(f"v_lshlrev_b32 v{T + 1}, 4, v{T + 1}")
    a(f"v_lshl_add_u32 v{V_QO}, v{T}, 8, v{T + 1}")
    a(f"v_mov_b32 v{V_NEG}, 0xf149f2ca")
    a(f"s_mov_b32 s{S_PH}, 0")
    if "prio1" in FLAGS or "prio0" in FLAGS:
        pl = a.uid("prio")
        a(f"s_cmp_eq_u32 s{S_G}, {1 if 'prio1' in FLAGS else 0}")
        a(f"s_cbranch_scc0 {pl}")
        a("s_setprio 1")
        a.label(pl)

    def dma(which, buf):
        if "a_nodma" in FLAGS:
            return
        vo, srd, so = ((V_DK, 8, S_KO), (V_DV, 12, S_VO))[which]
        for t in range(4):
            a(f"s_add_u32 m0, s{S_M0}, {buf * 32768 + which * 16384 + t * 4096}")
            if t == 0:
                a("s_nop 0")
                a(f"buffer_load_dwordx4 v{vo}, s[{srd}:{srd + 3}], s{so} offen lds")
            else:
                a(f"s_add_u32 s{S_T0}, s{so}, {t * 4096}")
                a(f"buffer_load_dwordx4 v{vo}, s[{srd}:{srd + 3}], s{S_T0} offen lds")
        a(f"s_add_u32 s{so}, s{so}, 32768")

    def dma_piece(which, buf, t, cond):
        if "a_nodma" in FLAGS:
            return []
        vo, srd, so = ((V_DK, 8, S_KO), (V_DV, 12, S_VO))[which]
        ops = []
        lab = None
        if cond is not None:
            lab = a.uid("nop")
            ops.append(f"s_cmp_eq_u32 s{cond}, 0")
            ops.append(f"s_cbranch_scc1 {lab}")
        ops.append(f"s_add_u32 m0, s{S_M0}, {buf * 32768 + which * 16384 + t * 4096}")
        ops.append(f"s_add_u32 s{S_T0}, s{so}, {t * 4096}")
        ops.append(f"buffer_load_dwordx4 v{vo}, s[{srd}:{srd + 3}], s{S_T0} offen lds")
        if t == 3:
            ops.append(f"s_add_u32 s{so}, s{so}, 32768")
        if lab is not None:
            ops.append(lab + ":")
        return ops

    def emit(op):
        if op.endswith(":"):
            a.label(op[:-1])
        else:
            a(op)

    def exp_ops(Sp, lo, hi):
        ops = []
        G = 4
        prev = None
        for g0 in range(lo, hi, G):
            for r in range(g0, g0 + G):
                ops.append(f"v_exp_f32 v{Sp + r}, v{Sp + r}")
            if prev is not None:
                ops += adds_and_pack(Sp, prev, prev == 0)
            prev = g0
        ops.append("s_nop 0")
        ops += adds_and_pack(Sp, prev, prev == 0)
        if hi == 32 and "a_dot" not in FLAGS:
            ops.append(f"v_add_f32 v{V_L}, v{V_L}, v{T + 8}")
            ops.append(f"v_add_f32 v{V_L}, v{V_L}, v{T + 9}")
        return ops

    def adds_and_pack(Sp, g0, first):
        ops = []
        if "a_dot" in FLAGS:
            ops.append(f"v_cvt_pk_bf16_f32 v{Sp + g0 // 2}, v{Sp + g0}, v{Sp + g0 + 1}")
            ops.append(f"v_cvt_pk_bf16_f32 v{Sp + g0 // 2 + 1}, v{Sp + g0 + 2}, v{Sp + g0 + 3}")
            ops.append(f"v_dot2c_f32_bf16 v{V_L}, v{Sp + g0 // 2}, v{V_QO}")
            ops.append(f"v_dot2c_f32_bf16 v{V_AL}, v{Sp + g0 // 2 + 1}, v{V_QO}")
            return ops
        if first:
            ops.append(f"v_add_f32 v{T + 8}, v{Sp + g0}, v{Sp + g0 + 1}")
            ops.append(f"v_add_f32 v{T + 9}, v{Sp + g0 + 2}, v{Sp + g0 + 3}")
        else:
            ops.append(f"v_add_f32 v{T + 8}, v{T + 8}, v{Sp + g0}")
            ops.append(f"v_add_f32 v{T + 9}, v{T + 9}, v{Sp + g0 + 1}")
            ops.append(f"v_add_f32 v{T + 8}, v{T + 8}, v{Sp + g0 + 2}")
            ops.append(f"v_add_f32 v{T + 9}, v{T + 9}, v{Sp + g0 + 3}")
        ops.append(f"v_cvt_pk_bf16_f32 v{Sp + g0 // 2}, v{Sp + g0}, v{Sp + g0 + 1}")
        ops.append(f"v_cvt_pk_bf16_f32 v{Sp + g0 // 2 + 1}, v{Sp + g0 + 2}, v{Sp + g0 + 3}")
        return ops

    def max_ops(Sc):
        ops = []
        ops.append(f"v_max3_f32 v{T}, v{Sc}, v{Sc + 1}, v{Sc + 2}")
        ops.append(f"v_max3_f32 v{T + 1}, v{Sc + 3}, v{Sc + 4}, v{Sc + 5}")
        for r in range(6, 30, 4):
            ops.append(f"v_max3_f32 v{T}, v{T}, v{Sc + r}, v{Sc + r + 1}")
            ops.append(f"v_max3_f32 v{T + 1}, v{T + 1}, v{Sc + r + 2}, v{Sc + r + 3}")
        ops.append(f"v_max3_f32 v{T}, v{T}, v{Sc + 30}, v{Sc + 31}")
        ops.append(f"v_max_f32 v{T}, v{T}, v{T + 1}")
        return ops

    def max_update(Sc, first):
        a(f"v_mov_b32 v{T + 1}, v{T}")
        a("s_nop 1")
        a(f"v_permlane32_swap_b32 v{T}, v{T + 1}")
        a(f"v_max_f32 v{T}, v{T}, v{T + 1}")
        if first:
            a(f"v_max_f32 v{T}, 0xe0ad78ec, v{T}")
        else:
            a(f"v_max_f32 v{T}, 0, v{T}")
        a(f"v_exp_f32 v{V_AL}, -v{T}")
        a(f"v_add_f32 v{V_M}, v{V_M}, v{T}")
        for r in range(32):
            a(f"v_sub_f32 v{Sc + r}, v{Sc + r}, v{T}")
        for r in range(16):
            a(f"v_sub_f32 v{V_NM + r}, 0, v{V_M}")
        if not first:
            a(f"v_mul_f32 v{V_L}, v{V_L}, v{V_AL}")
            for r in range(64):
                a(f"v_mul_f32 v{V_O + r}, v{V_O + r}, v{V_AL}")

    def v_read(tr, f, vbuf):
        ks, db = f // 4, f % 4
        F = V_VF + (f % NF) * 4
        if "a_vt_emul" in FLAGS:
            tr.read(f"ds_read_b128 {vr(F, 4)}, v{V_KA + 2 * ks} offset:{vbuf * 32768 + 16384 + (db & 1) * 8192}", ("v", f))
            return
        tr.read(f"ds_read_b64_tr_b16 {vr(F, 2)}, v{V_VA + db} offset:{vbuf * 32768 + 16 * ks * 256}", ("v", f))
        tr.read(f"ds_read_b64_tr_b16 {vr(F + 2, 2)}, v{V_VA + db} offset:{vbuf * 32768 + (16 * ks + 8) * 256}", ("v", f))

    def k_read(tr, f, kbuf, nxt=False):
        kb, s = f % 2, f // 2
        F = V_KF + (f % NF) * 4
        tr.read(f"ds_read_b128 {vr(F, 4)}, v{V_KA + s} offset:{kbuf * 32768 + kb * 8192}", ("kn" if nxt else "k", f))

    SPLIT = int(os.environ.get("ATT_SPLIT", "24"))
    HB = int(os.environ.get("ATT_HB", "12"))
    GM = int(os.environ.get("ATT_GM", "1"))

    def next_head(tr, par):
        a("s_waitcnt vmcnt(0) lgkmcnt(0)")
        tr.done = len(tr.q) - 1
        if "a_nobar" not in FLAGS:
            a("s_barrier")
        stamp()
        for f in range(NF):
            k_read(tr, f, par ^ 1, nxt=True)
        a(f"s_add_u32 s{S_I}, s{S_I}, 1")
        a(f"s_add_u32 s{S_T1}, s{S_I}, 1")
        a(f"s_cmp_lt_u32 s{S_T1}, s{S_N}")
        a(f"s_cselect_b32 s{S_KF}, 1, 0")

    def iteration(par, do_qk, do_prev, may_mask, hook=None, first_pv=False):
        Sc = V_S + 32 * par
        Sp = V_S + 32 * (par ^ 1)
        tr = LdsTrack(a)
        novalu = "a_novalu" in FLAGS
        va = exp_ops(Sp, 0, SPLIT) if (do_prev and not novalu) else []
        if do_prev:
            tr.q = [("k", f) for f in range(NF)]
        if do_qk and not do_prev:
            for f in range(NF):
                k_read(tr, f, par)
        elif not do_qk:
            for f in range(NF):
                v_read(tr, f, par ^ 1)
        if hook is not None:
            hook()
        nm = 16 if do_qk else 0
        per = (len(va) + max(nm, 1) - 1) // max(nm, 1)
        xg = {f: [] for f in range(16)}
        if do_qk:
            for t in range(4):
                xg[2 * t] += dma_piece(0, par ^ 1, t, S_KF)
                xg[8 + 2 * t] += dma_piece(1, par, t, None)
        vi = 0
        for f0 in range(0, nm, GM):
            tr.wait(("k", f0 + GM - 1))
            for f in range(f0, f0 + GM):
                kb, s = f % 2, f // 2
                D = Sc + 16 * kb
                C = vr(V_NM, 16) if s == 0 else vr(D, 16)
                if "a_nomfma" not in FLAGS:
                    a(f"v_mfma_f32_32x32x16_bf16 {vr(D, 16)}, {vr(V_KF + (f % NF) * 4, 4)}, {vr(V_Q + 4 * s, 4)}, {C}")
            for f in range(f0, f0 + GM):
                if f + NF < 16:
                    k_read(tr, f + NF, par)
                elif do_prev:
                    v_read(tr, f + NF - 16, par ^ 1)
            for f in range(f0, f0 + GM):
                for op in xg[f]:
                    emit(op)
                for op in va[vi:vi + per]:
                    a(op)
                vi += per
        for op in va[vi:]:
            a(op)
        if do_qk and may_mask:
            nomask = a.uid("nomask")
            a(f"s_cmp_lg_u32 s{S_KF}, 0")
            a(f"s_cbranch_scc1 {nomask}")
            a("s_nop 7")
            a("s_nop 3")
            for r0 in range(0, 32, 4):
                for i in range(4):
                    r = r0 + i
                    key = (r >> 4) * 32 + ((r & 15) >> 2) * 8 + (r & 3)
                    a(f"v_cmp_le_i32 s[{S_MASK + 2 * i}:{S_MASK + 2 * i + 1}], {key}, v{V_MQ}")
                a("s_nop 1")
                for i in range(4):
                    r = r0 + i
                    a(f"v_cndmask_b32 v{Sc + r}, v{V_NEG}, v{Sc + r}, s[{S_MASK + 2 * i}:{S_MASK + 2 * i + 1}]")
            a.label(nomask)
        vb = max_ops(Sc) if (do_qk and "a_nomax" not in FLAGS) else []
        if not do_prev:
            a("s_nop 7")
            a("s_nop 3")
            for op in vb:
                a(op)
            next_head(tr, par)
            max_update(Sc, True)
            return
        a("s_nop 1")
        gaps = {f: [] for f in range(16)}
        v2 = exp_ops(Sp, SPLIT, 32) if not novalu else []
        nks = SPLIT // 8
        span = list(range(0, 4 * nks - GM))
        per = (len(v2) + len(span) - 1) // len(span)
        for k, f in enumerate(span):
            gaps[f] += v2[k * per:(k + 1) * per]
        if do_qk:
            span = list(range(5, 14))
            per = (len(vb) + len(span) - 1) // len(span)
            for k, f in enumerate(span):
                gaps[f] += vb[k * per:(k + 1) * per]
            gaps[14].append(f"v_cmp_lt_f32 vcc, s{S_C}, v{T}")
        gaps[4 * nks - 1].append("s_nop 1")
        for f0 in range(0, 16, GM):
            if do_qk and f0 == HB:
                next_head(tr, par)
            tr.wait(("v", f0 + GM - 1))
            for f in range(f0, f0 + GM):
                ks, db = f // 4, f % 4
                D = V_O + 16 * db
                Cc = "0" if (first_pv and ks == 0) else vr(D, 16)
                if "a_nomfma" not in FLAGS:
                    a(f"v_mfma_f32_32x32x16_bf16 {vr(D, 16)}, {vr(V_VF + (f % NF) * 4, 4)}, {vr(Sp + 4 * ks, 4)}, {Cc}")
            for f in range(f0, f0 + GM):
                if f + NF < 16:
                    v_read(tr, f + NF, par ^ 1)
            for f in range(f0, f0 + GM):
                for op in gaps[f]:
                    a(op)
        if do_qk:
            skip = a.uid("norescale")
            a(f"s_cbranch_vccz {skip}")
            a("s_nop 7")
            a("s_nop 3")
            max_update(Sc, False)
            a.label(skip)

    def stamp(real=False):
        if "a_stamp" not in FLAGS:
            return
        sk = a.uid("nostamp")
        a(f"s_or_b32 s{S_T0}, s2, s{S_WAVE}")
        a(f"s_cmp_lg_u32 s{S_T0}, 0")
        a(f"s_cbranch_scc1 {sk}")
        a("s_memrealtime s[60:61]" if real else "s_memtime s[60:61]")
        a("s_waitcnt lgkmcnt(0)")
        a(f"v_mov_b32 v{T + 7}, s60")
        a(f"v_mov_b32 v{T + 6}, s62")
        a(f"buffer_store_dword v{T + 7}, v{T + 6}, s[56:59], 0 offen")
        a("s_add_u32 s62, s62, 4")
        a.label(sk)

    def iter_head(par, vm=0):
        a(f"s_waitcnt vmcnt({vm})")
        a("s_barrier")
        stamp()
        a(f"s_add_u32 s{S_T1}, s{S_I}, 1")
        a(f"s_cmp_lt_u32 s{S_T1}, s{S_N}")
        a(f"s_cselect_b32 s{S_KF}, 1, 0")

    QIMG = (16384, 131072)

    def k0_dma():
        a(f"s_lshl_b32 s{S_KO}, s{S_G}, 14")
        a(f"s_add_u32 s{S_KO}, s{S_KO}, s{S_HB}")
        a(f"s_lshl_b32 s{S_T0}, s{S_WQ}, 10")
        a(f"s_add_u32 s{S_KO}, s{S_KO}, s{S_T0}")
        a(f"s_mov_b32 s{S_VO}, s{S_KO}")
        dma(0, 0)

    def q_frag_reads(blk):
        a(f"s_lshl_b32 s{S_T0}, s{S_G}, 16")
        a(f"s_lshl_b32 s{S_T1}, s{S_WQ}, 13")
        a(f"s_sub_u32 s{S_T0}, s{S_T1}, s{S_T0}")
        a(f"s_add_u32 s{S_T0}, s{S_T0}, {QIMG[blk]}")
        for s in range(8):
            a(f"v_add_u32 v{T + 7}, s{S_T0}, v{V_KA + s}")
            a(f"ds_read_b128 {vr(V_Q + 4 * s, 4)}, v{T + 7}")

    def next_phase_hook():
        sk = a.uid("nonext")
        jn = a.uid("hookj")
        a(f"s_cmp_lg_u32 s{S_PH}, 0")
        a(f"s_cbranch_scc1 {sk}")
        k0_dma()
        q_frag_reads(1)
        a("s_waitcnt lgkmcnt(0)")
        a(f"s_branch {jn}")
        a.label(sk)
        if "a_nopf" not in FLAGS:
            a(f"v_lshlrev_b32 v{V_Q + 31}, 4, v{L}")
            make_srd(a, 76, 66, 0, 4 * MB)
            a(f"buffer_load_dwordx4 {vr(V_Q, 4)}, v{V_Q + 31}, s[76:79], s74 offen")
            a(f"buffer_load_dwordx4 {vr(V_Q + 4, 4)}, v{V_Q + 31}, s[76:79], s74 offen offset:1024")
            for k, pr in enumerate((68, 70, 72)):
                make_srd(a, 76, pr, 0, 512 * 1792 * 2)
                a(f"buffer_load_dwordx4 {vr(V_Q + 8 + 4 * k, 4)}, v{V_Q + 31}, s[76:79], s75 offen")
        a.label(jn)

    if "a_stamp" in FLAGS:
        a("s_load_dwordx2 s[54:55], s[0:1], 88")
        a("s_waitcnt lgkmcnt(0)")
        make_srd(a, 56, 54, 0, 256)
        a("s_mov_b32 s62, 0")
    def wgstamp(slot):
        if "a_wgstamp" not in FLAGS:
            return
        sk = a.uid("nowgs")
        a(f"s_cmp_lg_u32 s{S_WAVE}, 0")
        a(f"s_cbranch_scc1 {sk}")
        a("s_memrealtime s[60:61]")
        make_srd(a, 56, 20, 200 * MB, 65536)
        a("s_waitcnt lgkmcnt(0)")
        a(f"v_mov_b32 v{T + 7}, s60")
        a(f"s_lshl_b32 s{S_T0}, s2, 4")
        a(f"s_add_u32 s{S_T0}, s{S_T0}, {slot * 4}")
        a(f"v_mov_b32 v{T + 6}, s{S_T0}")
        a(f"buffer_store_dword v{T + 7}, v{T + 6}, s[56:59], 0 offen")
        if slot == 0:
            a("s_getreg_b32 s60, hwreg(HW_REG_HW_ID)")
            a("s_getreg_b32 s61, hwreg(HW_REG_XCC_ID)")
            a(f"v_mov_b32 v{T + 7}, s60")
            a(f"buffer_store_dword v{T + 7}, v{T + 6}, s[56:59], 0 offen offset:8")
            a(f"v_mov_b32 v{T + 7}, s61")
            a(f"buffer_store_dword v{T + 7}, v{T + 6}, s[56:59], 0 offen offset:12")
        a.label(sk)
    wgstamp(0)
    gemm_mainloop(a, qc)
    make_srd(a, 8, 20, WS_K, 16 * MB)
    make_srd(a, 12, 20, WS_V, 16 * MB)
    make_srd(a, 16, 20, WS_CTX, 2048 * CTX_LD)
    a("s_barrier")
    k0_dma()
    a(f"s_mov_b32 s{S_T1}, 0x3e0293ee")
    a(f"v_and_b32 v{T}, 31, v{L}")
    a(f"s_lshl_b32 s{S_T0}, s{S_WQ}, 5")
    a(f"v_add_u32 v{T + 1}, s{S_T0}, v{T}")
    a(f"v_lshlrev_b32 v{T + 1}, 8, v{T + 1}")
    a(f"v_lshrrev_b32 v{T + 2}, 5, v{L}")
    a(f"v_lshl_add_u32 v{T + 1}, v{T + 2}, 3, v{T + 1}")
    a(f"v_add_u32 v{T + 5}, {QIMG[1]}, v{T + 1}")
    a(f"v_add_u32 v{T + 1}, {QIMG[0]}, v{T + 1}")
    a(f"v_and_b32 v{T + 2}, 15, v{T}")
    a(f"s_lshl_b32 s{S_T0}, s{S_G}, 3")
    a(f"v_xor_b32 v{T + 2}, s{S_T0}, v{T + 2}")
    a(f"v_lshlrev_b32 v{T + 2}, 4, v{T + 2}")
    pi = 0
    for nt in range(2):
        for j in range(4):
            a(f"v_xor_b32 v{T + 3}, {(nt * 4 + j) << 4}, v{T + 2}")
            a(f"v_add_u32 v{T + 4}, v{T + 3}, v{T + 5}")
            a(f"v_add_u32 v{T + 3}, v{T + 3}, v{T + 1}")
            for mt in range(2):
                r = qc.acc(nt, mt) + 4 * j
                pp = V_S + 2 * (pi % 8)
                pi += 1
                for q in range(4):
                    a(f"v_mul_f32 v{r + q}, s{S_T1}, v{r + q}")
                a(f"v_cvt_pk_bf16_f32 v{pp}, v{r}, v{r + 1}")
                a(f"v_cvt_pk_bf16_f32 v{pp + 1}, v{r + 2}, v{r + 3}")
                a(f"ds_write_b64 v{T + 3 + mt}, {vr(pp, 2)}")
    a("s_waitcnt lgkmcnt(0)")
    a("s_barrier")
    q_frag_reads(0)
    a("s_load_dwordx2 s[66:67], s[0:1], 40")
    a("s_load_dwordx4 s[68:71], s[0:1], 56")
    a("s_load_dwordx2 s[72:73], s[0:1], 72")
    a(f"s_lshl_b32 s{S_T0}, s2, 3")
    a(f"s_add_u32 s{S_T0}, s{S_T0}, s{S_WAVE}")
    a(f"s_lshl_b32 s74, s{S_T0}, 11")
    a(f"s_lshl_b32 s75, s{S_T0}, 10")
    a("s_waitcnt lgkmcnt(0)")
    a(f"s_mul_i32 s{S_T0}, s{S_WQ}, 8704")
    a(f"s_add_u32 s{S_T0}, s{S_T0}, 16384")
    a(f"s_lshl_b32 s{S_T1}, s{S_G}, 16")
    a(f"s_add_u32 s{S_XO}, s{S_T0}, s{S_T1}")
    a(f"s_xor_b32 s{S_XP}, s{S_XO}, 65536")
    a("s_waitcnt vmcnt(0) lgkmcnt(0)")
    phase = a.uid("phase")
    a.label(phase)
    for r in range(16):
        a(f"v_mov_b32 v{V_NM + r}, 0")
    a(f"v_mov_b32 v{V_M}, 0")
    a(f"v_mov_b32 v{V_L}, 0")
    a(f"s_add_u32 s{S_N}, s{S_QB}, 1")
    a(f"s_mov_b32 s{S_I}, 0")
    iter_head(0, 4)
    iteration(0, True, False, True)
    loop = a.uid("aloop")
    tail0 = a.uid("tail0")
    tail1 = a.uid("tail1")
    tail1f = a.uid("tail1f")
    mid = a.uid("amid")
    done = a.uid("adone")
    a(f"s_cmp_ge_u32 s{S_I}, s{S_N}")
    a(f"s_cbranch_scc1 {tail1f}")
    iteration(1, True, True, True, first_pv=True)
    a(f"s_branch {mid}")
    a.label(loop)
    a(f"s_cmp_ge_u32 s{S_I}, s{S_N}")
    a(f"s_cbranch_scc1 {tail1}")
    iteration(1, True, True, True)
    a.label(mid)
    a(f"s_cmp_ge_u32 s{S_I}, s{S_N}")
    a(f"s_cbranch_scc1 {tail0}")
    iteration(0, True, True, True)
    a(f"s_branch {loop}")
    a.label(tail1f)
    iteration(1, False, True, False, next_phase_hook, first_pv=True)
    a(f"s_branch {done}")
    a.label(tail1)
    iteration(1, False, True, False, next_phase_hook)
    a(f"s_branch {done}")
    a.label(tail0)
    iteration(0, False, True, False, next_phase_hook)
    a.label(done)

    V_F = V_KF
    stamp()
    stamp(True)
    a("s_barrier")
    a(f"v_mov_b32 v{T}, v{V_L}")
    a("s_nop 1")
    a(f"v_permlane32_swap_b32 v{T}, v{V_L}")
    a(f"v_add_f32 v{V_L}, v{V_L}, v{T}")
    a(f"v_lshlrev_b32 v{T}, 4, v{L}")
    a(f"v_add_u32 v{T + 1}, s{S_XO}, v{T}")
    a(f"v_add_u32 v{T + 2}, s{S_XP}, v{T}")
    a(f"v_lshlrev_b32 v{T}, 2, v{L}")
    a(f"v_add_u32 v{T + 3}, s{S_XO}, v{T}")
    a(f"v_add_u32 v{T + 4}, s{S_XP}, v{T}")
    a(f"v_and_b32 v{T + 7}, 31, v{L}")
    a(f"v_mul_u32_u24 v{T + 7}, {CTX_LD}, v{T + 7}")
    a(f"v_lshrrev_b32 v{T + 8}, 5, v{L}")
    a(f"v_lshl_add_u32 v{T + 8}, v{T + 8}, 4, v{T + 7}")
    a(f"s_lshl_b32 s{S_T0}, s{S_QB}, 7")
    a(f"s_lshl_b32 s{S_T1}, s{S_WQ}, 5")
    a(f"s_add_u32 s{S_T0}, s{S_T0}, s{S_T1}")
    a(f"s_mul_i32 s{S_T0}, s{S_T0}, {CTX_LD}")
    a(f"s_add_u32 s{S_T0}, s{S_T0}, s22")
    a(f"s_lshl_b32 s{S_T1}, s{S_G}, 7")
    a(f"s_add_u32 s65, s{S_T0}, s{S_T1}")

    def merge(g):
        keep = V_O + 32 * g
        send = V_O + 32 * (1 - g)
        for t in range(8):
            a(f"ds_write_b128 v{T + 1}, {vr(send + 4 * t, 4)} offset:{t * 1024}")
        a(f"ds_write_b32 v{T + 3}, v{V_M} offset:8192")
        a(f"ds_write_b32 v{T + 3}, v{V_L} offset:8448")
        a("s_waitcnt lgkmcnt(0)")
        a("s_barrier")
        a(f"ds_read_b32 v{T + 5}, v{T + 4} offset:8192")
        a(f"ds_read_b32 v{T + 6}, v{T + 4} offset:8448")
        for t in range(8):
            a(f"ds_read_b128 {vr(V_F + 4 * t, 4)}, v{T + 2} offset:{t * 1024}")
        a("s_waitcnt lgkmcnt(8)")
        a(f"v_max_f32 v{T}, v{V_M}, v{T + 5}")
        a(f"v_sub_f32 v{T + 1}, v{V_M}, v{T}")
        a(f"v_sub_f32 v{T + 2}, v{T + 5}, v{T}")
        a(f"v_exp_f32 v{T + 1}, v{T + 1}")
        a(f"v_exp_f32 v{T + 2}, v{T + 2}")
        a("s_nop 0")
        a(f"v_mul_f32 v{T + 3}, v{T + 1}, v{V_L}")
        a(f"v_fmac_f32 v{T + 3}, v{T + 2}, v{T + 6}")
        a(f"v_rcp_f32 v{T + 3}, v{T + 3}")
        a("s_nop 0")
        a(f"v_mul_f32 v{T + 1}, v{T + 1}, v{T + 3}")
        a(f"v_mul_f32 v{T + 2}, v{T + 2}, v{T + 3}")
        if "a_direct" in FLAGS:
            for pr in range(4):
                a(f"s_waitcnt lgkmcnt({6 - 2 * pr})")
                for r in range(8 * pr, 8 * pr + 8):
                    a(f"v_mul_f32 v{keep + r}, v{keep + r}, v{T + 1}")
                    a(f"v_fmac_f32 v{keep + r}, v{V_F + r}, v{T + 2}")
                P = V_S + 4 * pr
                for q in range(4):
                    a(f"v_cvt_pk_bf16_f32 v{P + q}, v{keep + 8 * pr + 2 * q}, v{keep + 8 * pr + 2 * q + 1}")
                a("s_nop 1")
                a(f"v_permlane32_swap_b32 v{P}, v{P + 2}")
                a(f"v_permlane32_swap_b32 v{P + 1}, v{P + 3}")
                a(f"buffer_store_dwordx4 {vr(P, 4)}, v{T + 8}, s[16:19], s65 offen offset:{32 * pr}")
            return
        for pr in range(4):
            a(f"s_waitcnt lgkmcnt({6 - 2 * pr})")
            for r in range(8 * pr, 8 * pr + 8):
                a(f"v_mul_f32 v{keep + r}, v{keep + r}, v{T + 1}")
                a(f"v_fmac_f32 v{keep + r}, v{V_F + r}, v{T + 2}")
        a("s_barrier")
        c = Shim()
        c.v_lane, c.v_t, c.TM, c.MT = L, T, 32, 1
        pool = [V_S + 32 + 2 * i for i in range(8)]
        st = {"i": 0}

        def src(nb, mt, j):
            p = pool[st["i"] % len(pool)]
            st["i"] += 1
            r = keep + 16 * nb + 4 * j
            a(f"v_cvt_pk_bf16_f32 v{p}, v{r}, v{r + 1}")
            a(f"v_cvt_pk_bf16_f32 v{p + 1}, v{r + 2}, v{r + 3}")
            return p
        RBo, region = epilogue_to_lds(a, c, 2, src, S_XO)
        nad, rpi = epilogue_read_addrs(a, c, RBo, region, V_S, S_XO)
        a(f"v_lshrrev_b32 v{T}, 3, v{L}")
        a(f"v_mul_u32_u24 v{T}, {CTX_LD}, v{T}")
        a(f"v_and_b32 v{T + 1}, 7, v{L}")
        a(f"v_lshl_add_u32 v{T + 8}, v{T + 1}, 4, v{T}")
        a("s_waitcnt lgkmcnt(0)")
        for i in range(4):
            a(f"ds_read_b128 {vr(V_F + 4 * i, 4)}, v{V_S + (i % nad)} offset:{i * rpi * RBo}")
        for i in range(4):
            a(f"s_waitcnt lgkmcnt({3 - i})")
            a(f"s_add_u32 s{S_T1}, s65, {i * 8 * CTX_LD}")
            a(f"buffer_store_dwordx4 {vr(V_F + 4 * i, 4)}, v{T + 8}, s[16:19], s{S_T1} offen")

    g1 = a.uid("g1")
    gj = a.uid("gj")
    a(f"s_cmp_eq_u32 s{S_G}, 1")
    a(f"s_cbranch_scc1 {g1}")
    merge(0)
    a(f"s_branch {gj}")
    a.label(g1)
    merge(1)
    a.label(gj)
    a(f"s_add_u32 s{S_PH}, s{S_PH}, 1")
    a(f"s_mov_b32 s{S_QB}, s23")
    a(f"s_cmp_lt_u32 s{S_PH}, 2")
    a(f"s_cbranch_scc1 {phase}")
    wgstamp(1)
    if "k_stamp" in FLAGS:
        a("s_waitcnt vmcnt(0)")
    kstamp(a, 1)
    a.label(end)
    a("s_endpgm")
    return name, V_END, 163840
```

```python
from asmlib import vr, sr
import os
FLAGS = set(os.environ.get("GENFLAGS", "").split(","))


class GemmCfg:
    def __init__(self, BM, BN, WM, WN, K, lda, ldb, nsub=1, NS=2, vmap=None, x_piece_rows=None, BK=64):
        self.BM, self.BN, self.WM, self.WN, self.K = BM, BN, WM, WN, K
        self.NS = NS
        self.BK = BK
        self.XR = BK * 2
        self.KS = BK // 16
        self.rpx = 1024 // self.XR
        self.lda, self.ldb, self.nsub = lda, ldb, nsub
        self.NW = WM * WN
        self.TM, self.TN = BM // WM, BN // WN
        self.MT, self.NT = self.TM // 32, self.TN // 32
        self.BNs = BN // nsub
        self.RB = self.BNs * 2
        assert self.RB in (128, 256, 512)
        self.NTs = self.NT // nsub
        self.XST = BM * self.XR
        self.WST = BK * BN * 2
        self.STAGE = self.XST + self.WST
        self.nsteps = K // BK
        self.npx = BM // self.rpx // self.NW
        self.rpp = 1024 // self.RB
        self.npw = (BK // self.rpp) // self.NW
        assert self.npx >= 1 and self.npw >= 1
        self.v_lane = 1
        self.v_t = 2
        self.v_x = 10
        self.v_w = 11
        base = 12
        self.v_va = base
        base += max(4, self.NT)
        self.v_vb = base
        base += 4
        base = (base + 3) // 4 * 4
        self.v_A = base
        base += 2 * self.NT * 4
        self.v_B = base
        base += 2 * self.MT * 4
        self.v_acc = base
        base += 16 * self.NT * self.MT
        self.v_end = base
        if vmap:
            for k, v in vmap.items():
                setattr(self, k, v)
        self.x_piece_rows = x_piece_rows if x_piece_rows is not None else self.NW * self.rpx

    def acc(self, nt, mt):
        return self.v_acc + 16 * (nt * self.MT + mt)

    def reads_per_step(self):
        return 2 * self.NT + self.MT

    def ppw(self):
        return self.npx + self.nsub * self.npw

    def lds_bytes(self):
        return self.NS * self.STAGE


S_SRD_X = 4
S_SRD_W = 8
S_WAVE = 24
S_XOFF = 25
S_WOFF = 26
S_CNT = 28
S_M0W = 29
S_T0 = 30
S_T1 = 31
S_WM = 32
S_WN = 33


def gemm_setup(a, c, s_m0, s_n0_list, s_k0=None):
    L = c.v_lane
    t = c.v_t
    a(f"v_and_b32 v{L}, 63, v0")
    a(f"v_lshrrev_b32 v{t}, 6, v0")
    a("s_nop 0")
    a(f"v_readfirstlane_b32 s{S_WAVE}, v{t}")
    a("s_nop 3")
    gstamp_init(a)
    gstamp(a, c)
    a(f"s_lshl_b32 s{S_M0W}, s{S_WAVE}, 10")
    a(f"s_and_b32 s{S_T0}, s{S_WAVE}, 1")
    a(f"s_and_b32 s{S_WM}, s{S_WAVE}, {c.WM - 1}")
    a(f"s_lshr_b32 s{S_WN}, s{S_WAVE}, {c.WM.bit_length() - 1}")
    if c.BK == 64:
        a(f"s_lshl_b32 s{S_T1}, s{S_T0}, 2")
        a(f"v_lshrrev_b32 v{t}, 4, v{L}")
        a(f"v_add_u32 v{t}, s{S_T1}, v{t}")
        a(f"v_and_b32 v{t}, 7, v{t}")
        a(f"v_and_b32 v{t + 1}, 7, v{L}")
        a(f"v_xor_b32 v{t}, v{t}, v{t + 1}")
        a(f"v_lshlrev_b32 v{t}, 4, v{t}")
        a(f"v_lshrrev_b32 v{t + 1}, 3, v{L}")
    else:
        a(f"v_lshrrev_b32 v{t}, 4, v{L}")
        a(f"v_and_b32 v{t + 1}, 3, v{L}")
        a(f"v_xor_b32 v{t}, v{t}, v{t + 1}")
        a(f"v_lshlrev_b32 v{t}, 4, v{t}")
        a(f"v_lshrrev_b32 v{t + 1}, 2, v{L}")
    a(f"s_mov_b32 s{S_T1}, {c.lda}")
    a(f"v_mul_lo_u32 v{t + 1}, v{t + 1}, s{S_T1}")
    a(f"v_add_u32 v{c.v_x}, v{t}, v{t + 1}")
    cpr = c.RB // 16
    lg = cpr.bit_length() - 1
    a(f"v_lshrrev_b32 v{t}, {lg}, v{L}")
    if c.RB == 512:
        a(f"s_lshl_b32 s{S_T1}, s{S_T0}, 1")
        a(f"v_add_u32 v{t + 1}, s{S_T1}, v{t}")
        a(f"v_and_b32 v{t + 1}, 3, v{t + 1}")
        a(f"v_lshlrev_b32 v{t + 1}, 2, v{t + 1}")
    elif c.RB == 256:
        a(f"v_and_b32 v{t + 1}, 3, v{t}")
        a(f"v_lshlrev_b32 v{t + 1}, 2, v{t + 1}")
    else:
        a(f"v_lshrrev_b32 v{t + 1}, 1, v{t}")
        a(f"v_and_b32 v{t + 1}, 1, v{t + 1}")
        a(f"v_lshlrev_b32 v{t + 1}, 2, v{t + 1}")
    a(f"v_and_b32 v{t + 2}, {cpr - 1}, v{L}")
    a(f"v_xor_b32 v{t + 1}, v{t + 1}, v{t + 2}")
    a(f"v_lshlrev_b32 v{t + 1}, 4, v{t + 1}")
    a(f"s_mov_b32 s{S_T1}, {c.ldb}")
    a(f"v_mul_lo_u32 v{t}, v{t}, s{S_T1}")
    a(f"v_add_u32 v{c.v_w}, v{t}, v{t + 1}")
    a(f"s_mul_i32 s{S_T0}, s{S_WAVE}, {c.rpx}")
    a(f"s_add_u32 s{S_T0}, s{S_T0}, s{s_m0}")
    a(f"s_mul_i32 s{S_XOFF}, s{S_T0}, {c.lda}")
    if s_k0 is not None:
        a(f"s_lshl_b32 s{S_T0}, s{s_k0}, 1")
        a(f"s_add_u32 s{S_XOFF}, s{S_XOFF}, s{S_T0}")
    for sub in range(c.nsub):
        a(f"s_mul_i32 s{S_T0}, s{S_WAVE}, {c.rpp}")
        if s_k0 is not None:
            a(f"s_add_u32 s{S_T0}, s{S_T0}, s{s_k0}")
        a(f"s_mul_i32 s{S_WOFF + sub}, s{S_T0}, {c.ldb}")
        a(f"s_lshl_b32 s{S_T0}, s{s_n0_list[sub]}, 1")
        a(f"s_add_u32 s{S_WOFF + sub}, s{S_WOFF + sub}, s{S_T0}")


def gemm_dma_pieces(c, buf):
    xb = buf * c.STAGE
    wb = buf * c.STAGE + c.XST
    out = []
    for t in range(c.npx):
        g = [f"s_add_u32 m0, s{S_M0W}, {xb + t * c.NW * 1024}",
             f"s_add_u32 s{S_T0}, s{S_XOFF}, {t * c.x_piece_rows * c.lda}",
             f"buffer_load_dwordx4 v{c.v_x}, s[{S_SRD_X}:{S_SRD_X + 3}], s{S_T0} offen lds"]
        if t == c.npx - 1:
            g.append(f"s_add_u32 s{S_XOFF}, s{S_XOFF}, {c.XR}")
        out.append(g)
    for sub in range(c.nsub):
        srd = S_SRD_W + 4 * sub
        sb = wb + sub * c.BK * c.RB
        for t in range(c.npw):
            g = [f"s_add_u32 m0, s{S_M0W}, {sb + t * c.NW * 1024}",
                 f"s_add_u32 s{S_T0}, s{S_WOFF + sub}, {t * c.NW * c.rpp * c.ldb}",
                 f"buffer_load_dwordx4 v{c.v_w}, s[{srd}:{srd + 3}], s{S_T0} offen lds"]
            if t == c.npw - 1:
                g.append(f"s_add_u32 s{S_WOFF + sub}, s{S_WOFF + sub}, {c.BK * c.ldb}")
            out.append(g)
    return out


def gemm_dma_prologue(a, c):
    for k in range(min(c.NS - 1, c.nsteps)):
        for g in gemm_dma_pieces(c, k % c.NS):
            for op in g:
                a(op)


def gemm_read_addrs(a, c):
    L = c.v_lane
    t = c.v_t
    a(f"v_and_b32 v{t}, 31, v{L}")
    a(f"s_mul_i32 s{S_T0}, s{S_WM}, {c.TM}")
    a(f"v_add_u32 v{t}, s{S_T0}, v{t}")
    if c.BK == 64:
        a(f"v_bfe_u32 v{t + 1}, v{t}, 1, 3")
    else:
        a(f"v_bfe_u32 v{t + 1}, v{t}, 2, 2")
    a(f"v_lshrrev_b32 v{t + 2}, 5, v{L}")
    a(f"v_xor_b32 v{t + 1}, v{t + 1}, v{t + 2}")
    a(f"v_lshlrev_b32 v{t}, {c.XR.bit_length() - 1}, v{t}")
    for s in range(c.KS):
        a(f"v_xor_b32 v{t + 3}, {2 * s}, v{t + 1}")
        a(f"v_lshl_add_u32 v{c.v_vb + s}, v{t + 3}, 4, v{t}")
    a(f"v_and_b32 v{t}, 15, v{L}")
    a(f"v_lshrrev_b32 v{t + 1}, 2, v{t}")
    a(f"v_and_b32 v{t + 2}, 3, v{t}")
    a(f"v_lshrrev_b32 v{t + 3}, 5, v{L}")
    a(f"v_lshl_add_u32 v{t + 3}, v{t + 3}, 3, v{t + 1}")
    a(f"v_lshlrev_b32 v{t + 3}, {c.RB.bit_length() - 1}, v{t + 3}")
    a(f"v_and_b32 v{t + 4}, 1, v{t + 2}")
    a(f"v_lshl_add_u32 v{t + 3}, v{t + 4}, 3, v{t + 3}")
    a(f"v_lshrrev_b32 v{t + 4}, 1, v{t + 2}")
    a(f"v_bfe_u32 v{t + 5}, v{L}, 4, 1")
    a(f"v_lshl_add_u32 v{t + 4}, v{t + 5}, 1, v{t + 4}")
    a(f"v_lshl_add_u32 v{t + 3}, v{t + 4}, 4, v{t + 3}")
    if c.RB == 128:
        a(f"v_lshrrev_b32 v{t + 1}, 1, v{t + 1}")
    for nt in range(c.NT):
        sub = nt // c.NTs
        nts = nt % c.NTs
        a(f"s_mul_i32 s{S_T0}, s{S_WN}, {c.NTs}")
        a(f"s_add_u32 s{S_T0}, s{S_T0}, {nts}")
        a(f"v_xor_b32 v{t + 4}, s{S_T0}, v{t + 1}")
        a(f"v_lshl_add_u32 v{t + 4}, v{t + 4}, 6, v{t + 3}")
        a(f"v_add_u32 v{c.v_va + nt}, {c.XST + sub * c.BK * c.RB}, v{t + 4}")


def _reads(a, c, s, st):
    for nt in range(c.NT):
        A = c.v_A + (st * c.NT + nt) * 4
        va = c.v_va + nt
        a(f"ds_read_b64_tr_b16 {vr(A, 2)}, v{va} offset:{16 * s * c.RB}")
        a(f"ds_read_b64_tr_b16 {vr(A + 2, 2)}, v{va} offset:{(16 * s + 4) * c.RB}")
    for mt in range(c.MT):
        B = c.v_B + (st * c.MT + mt) * 4
        a(f"ds_read_b128 {vr(B, 4)}, v{c.v_vb + s} offset:{mt * 32 * c.XR}")


def gemm_kstep_compute(a, c, pieces, first, advance, fill=None, head=None, pre_read=False):
    n = c.reads_per_step()
    per_s = c.NT * c.MT
    nm = c.KS * per_s
    usable = nm - per_s if head is not None else nm
    every = max(1, usable // max(1, len(pieces)))
    if c.NS == 2:
        every = max(1, every // 3)
    pieces = list(pieces)
    cnt = 0
    if not pre_read:
        _reads(a, c, 0, 0)
    for s in range(c.KS):
        last = s == c.KS - 1
        if not last:
            _reads(a, c, s + 1, (s + 1) & 1)
            a(f"s_waitcnt lgkmcnt({n})")
        else:
            a("s_waitcnt lgkmcnt(0)")
            for g in pieces:
                for op in g:
                    a(op)
            pieces = []
            if advance is not None:
                for r in list(range(c.v_va, c.v_va + c.NT)) + list(range(c.v_vb, c.v_vb + c.KS)):
                    a(f"v_add_u32 v{r}, {advance & 0xffffffff}, v{r}")
        st = s & 1
        i = 0
        for nt in range(c.NT):
            A = c.v_A + (st * c.NT + nt) * 4
            for mt in range(c.MT):
                if last and head is not None and i == per_s // 2:
                    head()
                    _reads(a, c, 0, 0)
                B = c.v_B + (st * c.MT + mt) * 4
                D = c.acc(nt, mt)
                C = "0" if (first and s == 0) else vr(D, 16)
                if "nomfma" not in FLAGS:
                    a(f"v_mfma_f32_32x32x16_bf16 {vr(D, 16)}, {vr(A, 4)}, {vr(B, 4)}, {C}")
                cnt += 1
                i += 1
                if pieces and cnt % every == 0:
                    for op in pieces.pop(0):
                        a(op)
                elif fill:
                    for op in fill.pop(0):
                        a(op)


def gstamp_init(a):
    if "g_stamp" not in FLAGS:
        return
    a("s_load_dwordx2 s[90:91], s[0:1], 88")
    a("s_waitcnt lgkmcnt(0)")
    a("s_mov_b32 s92, s90")
    a("s_mov_b32 s93, s91")
    a("s_mov_b32 s94, 256")
    a("s_mov_b32 s95, 0x00020000")
    a("s_mov_b32 s98, 0")


def gstamp(a, c):
    if "g_stamp" not in FLAGS:
        return
    sk = a.uid("nogs")
    a("s_xor_b32 s99, s2, 8")
    a(f"s_or_b32 s99, s99, s{S_WAVE}")
    a("s_cmp_lg_u32 s99, 0")
    a(f"s_cbranch_scc1 {sk}")
    a("s_memtime s[96:97]")
    a("s_waitcnt lgkmcnt(0)")
    a(f"v_mov_b32 v{c.v_t + 7}, s96")
    a(f"v_mov_b32 v{c.v_t + 6}, s98")
    a(f"buffer_store_dword v{c.v_t + 7}, v{c.v_t + 6}, s[92:95], 0 offen")
    a("s_add_u32 s98, s98, 4")
    a.label(sk)


def gemm_zero_acc(a, c):
    for r in range(16 * c.NT * c.MT):
        a(f"v_mov_b32 v{c.v_acc + r}, 0")


def gemm_mainloop(a, c, extra_vm=0, fill=None, fill_from=2):
    hoist = "nohoist" not in FLAGS and c.KS % 2 == 0

    def head_for(k):
        def f():
            inflight = min(c.NS - 2, c.nsteps - 1 - k)
            vm = inflight * c.ppw() + (extra_vm if k == 0 else 0)
            a(f"s_waitcnt vmcnt({min(vm, 63)})")
            a("s_barrier")
            gstamp(a, c)
        return f

    for k in range(c.nsteps):
        if k == 0 or not hoist:
            head_for(k)()
        kn = k + c.NS - 1
        pieces = gemm_dma_pieces(c, kn % c.NS) if kn < c.nsteps else []
        adv = None
        if k + 1 < c.nsteps:
            nb, cb = (k + 1) % c.NS, k % c.NS
            adv = (nb - cb) * c.STAGE
        nh = head_for(k + 1) if (hoist and k + 1 < c.nsteps) else None
        gemm_kstep_compute(a, c, pieces, k == 0, adv, fill if k >= fill_from else None, nh, hoist and k > 0)
    assert not fill
    gstamp(a, c)


def epilogue_to_lds(a, c, nblocks, src_fn, s_base=None):
    L = c.v_lane
    t = c.v_t
    RBo = nblocks * 64
    cpr = RBo // 16
    region = c.TM * RBo
    a(f"v_and_b32 v{t}, 31, v{L}")
    a(f"v_lshlrev_b32 v{t + 1}, {RBo.bit_length() - 1}, v{t}")
    a(f"v_lshrrev_b32 v{t + 2}, 5, v{L}")
    a(f"v_lshl_add_u32 v{t + 1}, v{t + 2}, 3, v{t + 1}")
    if s_base is None:
        a(f"s_mul_i32 s{S_T0}, s{S_WAVE}, {region}")
        a(f"v_add_u32 v{t + 1}, s{S_T0}, v{t + 1}")
    else:
        a(f"v_add_u32 v{t + 1}, s{s_base}, v{t + 1}")
    lgc = cpr.bit_length() - 1
    a(f"v_bfe_u32 v{t + 2}, v{t}, {4 - lgc}, {lgc}")
    a(f"v_lshlrev_b32 v{t + 2}, 4, v{t + 2}")
    for nb in range(nblocks):
        for j in range(4):
            chunk = nb * 4 + j
            a(f"v_xor_b32 v{t + 3}, {chunk << 4}, v{t + 2}")
            a(f"v_add_u32 v{t + 3}, v{t + 3}, v{t + 1}")
            for mt in range(c.MT):
                p = src_fn(nb, mt, j)
                a(f"ds_write_b64 v{t + 3}, {vr(p, 2)} offset:{mt * 32 * RBo}")
    return RBo, region


def epilogue_read_addrs(a, c, RBo, region, vdst, s_base=None):
    L = c.v_lane
    t = c.v_t
    cpr = RBo // 16
    lg = cpr.bit_length() - 1
    rpi = 64 // cpr
    a(f"v_lshrrev_b32 v{t}, {lg}, v{L}")
    a(f"v_lshlrev_b32 v{t}, {RBo.bit_length() - 1}, v{t}")
    if s_base is None:
        a(f"s_mul_i32 s{S_T0}, s{S_WAVE}, {region}")
        a(f"v_add_u32 v{t}, s{S_T0}, v{t}")
    else:
        a(f"v_add_u32 v{t}, s{s_base}, v{t}")
    a(f"v_and_b32 v{t + 1}, {cpr - 1}, v{L}")
    a(f"v_lshrrev_b32 v{t + 2}, 4, v{L}")
    a(f"v_xor_b32 v{t + 1}, v{t + 1}, v{t + 2}")
    a(f"v_lshlrev_b32 v{t + 1}, 4, v{t + 1}")
    nad = max(1, cpr // 4)
    for q in range(nad):
        a(f"v_xor_b32 v{t + 2}, {(4 * q) << 4}, v{t + 1}")
        a(f"v_add_u32 v{vdst + q}, v{t + 2}, v{t}")
    return nad, rpi
```
